```python
import torch

def _softmax(x, axis=-1):
    return torch.softmax(x, dim=axis)
def _gelu(x):
    return torch.nn.functional.gelu(x, approximate="tanh")
def _silu(x):
    return torch.nn.functional.silu(x)
def _sigmoid(x):
    return torch.sigmoid(x)
def _layernorm(x, axis=-1, eps=1e-5):
    m = x.mean(dim=axis, keepdim=True)
    v = x.var(dim=axis, keepdim=True, unbiased=False)
    return (x - m) / torch.sqrt(v + eps)
def _scatter_add(tgt, idx, src, axis=0):
    return tgt.clone().index_add_(axis, idx, src)
def _segment_sum(src, seg, n):
    out = torch.zeros((n,) + src.shape[1:], dtype=src.dtype)
    return out.index_add_(0, seg, src)
def _pad(x, pw):
    flat = tuple(v for pair in reversed(pw) for v in pair)
    return torch.nn.functional.pad(x, flat)

kernel_name = 'concat_heads__ssm_conv_s4__spectral_gfnet__prompt'

def setup_inputs():

    _w = (lambda a: (lambda t: t.to(torch.bfloat16) if t.is_floating_point() else t)(torch.as_tensor(a)))
    def _A_setup():
        B, L, D, N = 1, 2048, 512, 128
        A_re = -(lambda _x: torch.exp(torch.as_tensor(_x)))((lambda *s: torch.randn(*s, dtype=torch.bfloat16) * 6.4)(D, N))
        A_im = torch.pi * (lambda *s: torch.randn(*s, dtype=torch.bfloat16) * 0.05)(D, N)
        B_re = (lambda *s: torch.randn(*s, dtype=torch.bfloat16) * 0.1)(D, N)
        B_im = (lambda *s: torch.randn(*s, dtype=torch.bfloat16) * 0.1)(D, N)
        C_re = (lambda *s: torch.randn(*s, dtype=torch.bfloat16) * 0.1)(D, N)
        C_im = (lambda *s: torch.randn(*s, dtype=torch.bfloat16) * 0.1)(D, N)
        log_dt = (lambda *s: torch.randn(*s, dtype=torch.bfloat16) * 0.05)(D) * 0.5 - 4.0
        Dskip = (lambda *s: torch.randn(*s, dtype=torch.bfloat16) * 0.05)(D)
        return {
            "u": _w((lambda *s: torch.randn(*s, dtype=torch.bfloat16) * 0.05)(B, L, D)),
            "A_re": _w(A_re),
            "A_im": _w(A_im),
            "B_re": _w(B_re),
            "B_im": _w(B_im),
            "C_re": _w(C_re),
            "C_im": _w(C_im),
            "log_dt": _w(log_dt),
            "Dskip": _w(Dskip),
        }
    _A_in = _A_setup()

    def _B_setup():
        B, S, D = 1, 2048, 512
        Df = D // 2 + 1
        return {
            "x": _w((lambda *s: torch.randn(*s, dtype=torch.bfloat16) * 0.05)(B, S, D)),
            "w_r": _w((lambda *s: torch.randn(*s, dtype=torch.bfloat16) * 1.6)(S, Df) * 0.02),
            "w_i": _w((lambda *s: torch.randn(*s, dtype=torch.bfloat16) * 1.6)(S, Df) * 0.02),
        }
    _B_in = _B_setup()

    return {
        "A_u": _A_in["u"],
        "A_A_re": _A_in["A_re"],
        "A_A_im": _A_in["A_im"],
        "A_B_re": _A_in["B_re"],
        "A_B_im": _A_in["B_im"],
        "A_C_re": _A_in["C_re"],
        "A_C_im": _A_in["C_im"],
        "A_log_dt": _A_in["log_dt"],
        "A_Dskip": _A_in["Dskip"],
        "B_x": _B_in["x"],
        "B_w_r": _B_in["w_r"],
        "B_w_i": _B_in["w_i"],
    }

def reference(A_u, A_A_re, A_A_im, A_B_re, A_B_im, A_C_re, A_C_im, A_log_dt, A_Dskip, B_x, B_w_r, B_w_i):
    def _A_ref(u, A_re, A_im, B_re, B_im, C_re, C_im, log_dt, Dskip):
        Bsz, L, D = u.shape
        dt = torch.exp(log_dt)[:, None]
        A = A_re + 1j * A_im
        Bc = B_re + 1j * B_im
        Cc = C_re + 1j * C_im
        logdA = dt * A
        dB = dt * Bc
        l = (lambda x, dt: x.to(dt))(torch.arange(L), A_re.dtype)
        P = torch.exp(logdA[:, :, None] * l[None, None, :])
        K = torch.einsum("dn,dnl,dn->dl", Cc, P, dB).real
        L2 = 2 * L
        Kp = _pad(K, ((0, 0), (0, L)))
        up = (lambda x, *d: x.permute(*d))(u, 0, 2, 1)
        up = _pad(up, ((0, 0), (0, 0), (0, L)))
        Kf = (lambda x, axes=(-2,-1): torch.fft.rfft2(x.float(), dim=axes))(Kp[:, None, :], axes=(-2, -1))
        Uf = (lambda x, axes=(-2,-1): torch.fft.rfft2(x.float(), dim=axes))(up[:, :, None, :], axes=(-2, -1))
        Yf = Uf * Kf[None, :, :, :]
        y = (lambda x, s, axes=(-2,-1): torch.fft.irfft2(x, s=s, dim=axes).to(torch.bfloat16))(Yf, (1, L2), axes=(-2, -1))[:, :, 0, :L]
        y = (lambda x, *d: x.permute(*d))(y, 0, 2, 1) + u * Dskip[None, None, :]
        return y

    def _B_ref(x, w_r, w_i):
        B, S, D = x.shape
        X = (lambda x, axes=(-2,-1): torch.fft.rfft2(x.float(), dim=axes))(x, axes=(-2, -1))
        W = w_r + 1j * w_i
        X = X * W
        y = (lambda x, s, axes=(-2,-1): torch.fft.irfft2(x, s=s, dim=axes).to(torch.bfloat16))(X, (S, D), axes=(-2, -1))
        return y

    a = _A_ref(A_u, A_A_re, A_A_im, A_B_re, A_B_im, A_C_re, A_C_im, A_log_dt, A_Dskip)
    b = _B_ref(B_x, B_w_r, B_w_i)
    return torch.concatenate([a, b], axis=-1)
```

```python
import re

TRANS = ("v_exp_f32", "v_log_f32", "v_rcp_f32", "v_rsq_f32", "v_sqrt_f32", "v_sin_f32", "v_cos_f32")
REG = re.compile(r"^(-|\|)?(?:abs\()?([vsa])(?:(\d+)|\[(\d+):(\d+)\])\)?\|?$")


def regs_of(tok):
    tok = tok.strip()
    if tok in ("vcc", "exec", "m0", "scc"):
        return {tok}
    if tok in ("vcc_lo", "vcc_hi"):
        return {"vcc"}
    m = REG.match(tok)
    if not m:
        return set()
    k = m.group(2)
    if m.group(3) is not None:
        return {f"{k}{int(m.group(3))}"}
    return {f"{k}{i}" for i in range(int(m.group(4)), int(m.group(5)) + 1)}


class Ins:
    def __init__(self, text):
        self.text = text
        t = text.split(";")[0].strip()
        self.label = t.endswith(":")
        self.directive = t.startswith(".")
        self.op = "" if (self.label or self.directive or not t) else t.split()[0]
        rest = t[len(self.op):].strip() if self.op else ""
        ops = []
        for p in rest.split(","):
            w = p.strip().split()
            if w:
                ops.append(w[0])
        self.ops = ops
        op = self.op
        self.w, self.r = set(), set()
        self.mfma = op.startswith("v_mfma")
        self.valu = op.startswith("v_") and not self.mfma
        self.trans = op.replace("_e32", "") in TRANS
        self.vmem = op.startswith(("buffer_", "global_", "flat_"))
        self.ds = op.startswith("ds_")
        self.salu = op.startswith("s_")
        self.A = self.B = self.C = set()
        R = [regs_of(o) for o in ops]
        allr = set().union(*R) if R else set()
        if self.mfma:
            self.w = R[0]
            self.A, self.B, self.C = R[1], R[2], R[3]
            self.r = R[1] | R[2] | R[3]
            self.passes = 8 if "32x32" in op else 4
        elif self.valu:
            self.w = set(R[0])
            self.r = set().union(*R[1:]) if len(R) > 1 else set()
            if op.startswith(("v_fmac", "v_permlane", "v_pk_fmac", "v_dot2c")):
                self.r |= R[0]
            if op.startswith("v_permlane"):
                self.w |= R[1]
            if op.startswith(("v_add_co", "v_sub_co", "v_addc_co")):
                self.w |= R[1]
        elif self.vmem:
            if "store" in op or "_lds_" in op or "atomic" in op or " lds" in t:
                self.r = allr
            else:
                self.w = R[0]
                self.r = set().union(*R[1:])
                if "d16" in op:
                    self.r |= R[0]
        elif self.ds:
            if op.startswith(("ds_read", "ds_bpermute", "ds_permute", "ds_swizzle")):
                self.w = R[0]
                self.r = set().union(*R[1:])
            else:
                self.r = allr
        elif self.salu:
            if op.startswith(("s_cmp", "s_cbranch", "s_branch", "s_waitcnt", "s_barrier", "s_nop", "s_sleep", "s_endpgm", "s_setprio")):
                self.r = allr
            elif R:
                self.w = R[0]
                self.r = set().union(*R[1:]) if len(R) > 1 else set()
        self.states = 1 if self.op else 0
        if op == "s_nop":
            self.states = int(ops[0]) + 1
        self.widestore = self.vmem and "store" in op and ("x4" in op or "x3" in op)
        if self.widestore:
            self.sdata = R[0] if op.startswith("buffer") else R[1]


def need(p, c):
    n = 0
    vw = {x for x in p.w if x[0] in "va" and x not in ("vcc",)}
    sw = {x for x in p.w if x[0] == "s" or x == "vcc"}
    if p.valu:
        if c.mfma and vw & c.r:
            n = max(n, 2)
        if p.trans and c.valu and not c.trans and vw & c.r:
            n = max(n, 1)
        if p.trans and (c.vmem or c.ds) and vw & c.r:
            n = max(n, 1)
        if c.op.startswith(("v_readlane", "v_readfirstlane")) and vw & c.r:
            n = max(n, 1)
        if (c.op.startswith("v_permlane") or "dpp" in c.text or "row_" in c.text or "quad_perm" in c.text) and vw & c.r:
            n = max(n, 2)
        if c.valu and sw & c.r:
            n = max(n, 2)
        if c.vmem and sw & c.r:
            n = max(n, 5)
        if c.op.startswith(("v_readlane", "v_writelane")) and sw & c.r:
            n = max(n, 4)
        if c.salu and sw & c.r:
            n = max(n, 1)
        if c.op.startswith("s_cbranch_vcc") and "vcc" in sw:
            n = max(n, 1)
    if p.mfma:
        k = p.passes
        if c.mfma:
            if p.w & (c.A | c.B):
                n = max(n, k + 4)
            if p.w & c.C and not (p.w == c.C and p.passes == c.passes and p.op == c.op):
                n = max(n, k + 2)
            if p.w & c.w and not (p.w == c.C):
                n = max(n, k + 4)
        elif (c.valu or c.vmem or c.ds) and p.w & (c.r | c.w):
            n = max(n, k + 4)
        if c.valu and p.C & c.w:
            n = max(n, k - 1)
    if p.widestore and (c.valu or c.mfma) and p.sdata & c.w:
        n = max(n, 2)
    if p.salu and "m0" in p.w and ("lds" in c.text.split(";")[0]) and c.vmem:
        n = max(n, 1)
    return n


class Asm:
    def __init__(self):
        self.lines = []
        self.vfree = set(range(1, 256))
        self.names = {}
        self.vmax = 0
        self.nlab = 0

    def __call__(self, text):
        for l in text.split("\n"):
            l = l.strip()
            if l:
                self.lines.append(l)

    def v(self, n=1, align=None):
        align = align or (1 if n == 1 else 2)
        for s in range(0, 256 - n + 1, align):
            if all((s + i) in self.vfree for i in range(n)):
                for i in range(n):
                    self.vfree.discard(s + i)
                self.vmax = max(self.vmax, s + n)
                return s
        raise RuntimeError("out of VGPRs")

    def free(self, s, n=1):
        for i in range(n):
            assert (s + i) not in self.vfree, f"double free v{s+i}"
            self.vfree.add(s + i)

    def label(self, base):
        self.nlab += 1
        return f"L_{base}_{self.nlab}"

    def finish(self):
        out = []
        ins_out = []
        added = 0
        for l in self.lines:
            c = Ins(l)
            if c.op:
                dist = 0
                short = 0
                for p in reversed(ins_out):
                    if dist >= 24:
                        break
                    if p.op:
                        short = max(short, need(p, c) - dist)
                    dist += p.states
                while short > 0:
                    k = min(short, 16)
                    nop = Ins(f"s_nop {k-1}")
                    ins_out.append(nop)
                    out.append(nop.text)
                    short -= k
                    added += 1
            ins_out.append(c)
            out.append(l)
        self.added = added
        return out


def vr(s, n):
    return f"v{s}" if n == 1 else f"v[{s}:{s+n-1}]"


def f2u(x):
    import struct
    return "0x%08x" % struct.unpack("<I", struct.pack("<f", x))[0]
```

```python
import sys
sys.path.insert(0, "work")
from asmlib import Asm, vr, f2u

opt = dict(stamp=0, nt=1, fslp=8, pslp=2, prefetch=1, maxpoll=400000)
for arg in sys.argv[1:]:
    k, v = arg.split("=")
    opt[k] = int(v)
STAMP = opt["stamp"]
NT = " nt" if opt["nt"] else ""
KN = "concat_heads__ssm_conv_s4__spectral_gfnet__prompt_kernel"

WS_X1, WS_U = 0x000000, 0x200000
WS_FLB, WS_FLA = 0x400000, 0x404000
WS_EB, WS_EA = 0x408000, 0x408080
WS_STAMP = 0x600000
WS_SIZE = 0x800000
OOB = 0x40000000
XT, T1, S1 = 0, 16384, 1072
XS, WSL, ZT, T2, S2, ZS = 0, 18944, 0, 23040, 1216, 43712
UT0, YS, UT, UTS, KC, KCS, EB, RT, OT = 0, 0, 16384, 4640, 34944, 3088, 51328, 51328, 51328
LDS_BYTES = 88192

S_U, S_ARE, S_AIM, S_BRE, S_BIM, S_CRE, S_CIM, S_LDT = [f"s[{4+2*i}:{5+2*i}]" for i in range(8)]
S_DSK, S_X, S_WR, S_WI, S_OUT = "s[20:21]", "s[22:23]", "s[24:25]", "s[26:27]", "s[28:29]"
SRD = "s[32:35]"
IDX, WV = "s36", "s37"

a = Asm()
nstamp = [0]


def stamp():
    if STAMP:
        i = nstamp[0]
        nstamp[0] += 1
        assert i < 16
        a(f"s_memrealtime s[{64+2*i}:{65+2*i}]\ns_waitcnt lgkmcnt(0)")


def dump_stamps():
    if STAMP:
        v0_, v1_ = a.v(), a.v()
        a(f"s_mov_b64 exec, 1\ns_lshl_b32 s38, s2, 4\ns_add_u32 s38, s38, {WV}\ns_lshl_b32 s38, s38, 6\ns_add_u32 s38, s38, {WS_STAMP}\nv_mov_b32 v{v0_}, s38")
        for i in range(16):
            a(f"v_mov_b32 v{v1_}, s{64+2*i}\nbuffer_store_dword v{v1_}, v{v0_}, {SRD}, 0 offen offset:{4*i}")
        a.free(v0_); a.free(v1_)


def mfma32(d, A, B, c):
    a(f"v_mfma_f32_16x16x32_bf16 {vr(d,4)}, {vr(A,4)}, {vr(B,4)}, {vr(c,4) if c is not None else 0}")


def mfma16(d, A, B):
    a(f"v_mfma_f32_16x16x16_bf16 {vr(d,4)}, {vr(A,2)}, {vr(B,2)}, 0")


def cvt(d, x, y, nx=False, ny=False):
    a(f"v_cvt_pk_bf16_f32 v{d}, {'-' if nx else ''}v{x}, {'-' if ny else ''}v{y}")


def cmul(dr, di, x, y, c, s, conj):
    a(f"v_mul_f32 v{dr}, v{x}, v{c}\nv_mul_f32 v{di}, v{y}, v{c}")
    if conj:
        a(f"v_fmac_f32 v{dr}, v{y}, v{s}\nv_fma_f32 v{di}, -v{x}, v{s}, v{di}")
    else:
        a(f"v_fma_f32 v{dr}, -v{y}, v{s}, v{dr}\nv_fmac_f32 v{di}, v{x}, v{s}")


def sincos_chain(n, a0, step, cos_dst, sin_dst):
    for i in range(n):
        a(f"v_cos_f32 v{cos_dst+i}, v{a0}\nv_sin_f32 v{sin_dst+i}, v{a0}")
        if i < n - 1:
            a(f"v_add_f32 v{a0}, v{a0}, v{step}")


def poll_toggle(g0, g1, vaddr, off0, off1, old0, old1, imm1=None):
    L, Le = a.label("poll"), a.label("polled")
    t0, t1 = a.v(), a.v()
    a(f"s_mov_b32 s38, 0\n{L}:")
    a(f"buffer_load_dwordx4 {vr(g0,4)}, v{vaddr}, {SRD}, {off0} offen sc1")
    a(f"buffer_load_dwordx4 {vr(g1,4)}, v{vaddr}, {SRD}, {off1} offen{'' if imm1 is None else f' offset:{imm1}'} sc1")
    a(f"s_add_u32 s38, s38, 1\ns_waitcnt vmcnt(0)")
    a(f"v_xor_b32 v{t0}, v{g0}, v{old0}\nv_xor_b32 v{t1}, v{g1}, v{old1}\nv_and_b32 v{t0}, v{t0}, v{t1}\nv_and_b32 v{t0}, 1, v{t0}")
    a(f"v_cmp_eq_u32 vcc, 0, v{t0}\ns_cbranch_vccz {Le}\ns_mov_b64 exec, vcc")
    a(f"s_cmp_lt_u32 s38, {opt['maxpoll']}\ns_cbranch_scc1 {L}\n{Le}:\ns_mov_b64 exec, -1")
    a.free(t0); a.free(t1)


def helper_flags(fl, ep, vep):
    t = a.v()
    a(f"s_lshl_b32 s38, {IDX}, 7\ns_add_u32 s38, s38, {fl}\nv_mov_b32 v{t}, s38\ns_mov_b64 exec, 1")
    a(f"buffer_store_dword v{vep}, v{t}, {SRD}, 0 offen sc1\ns_mov_b64 exec, -1")
    a.free(t)


def helper_poll(fl, ep, vep, vL):
    L, Le, Ls = a.label("fpoll"), a.label("fpolled"), a.label("noepoch")
    t, f0, f1 = a.v(), a.v(), a.v()
    a(f"v_lshlrev_b32 v{t}, 7, v{vL}\ns_mov_b32 s39, {fl}\ns_mov_b32 s40, {fl+8192}\ns_mov_b32 s38, 0")
    if opt["fslp"]:
        a(f"s_sleep {opt['fslp']}")
    a(f"{L}:\nbuffer_load_dword v{f0}, v{t}, {SRD}, s39 offen sc1\nbuffer_load_dword v{f1}, v{t}, {SRD}, s40 offen sc1")
    a(f"s_add_u32 s38, s38, 1\ns_waitcnt vmcnt(0)\nv_xor_b32 v{f0}, v{f0}, v{vep}\nv_xor_b32 v{f1}, v{f1}, v{vep}\nv_or_b32 v{f0}, v{f0}, v{f1}")
    a(f"v_cmp_ne_u32 vcc, 0, v{f0}\ns_cbranch_vccz {Le}\ns_mov_b64 exec, vcc")
    a(f"s_cmp_lt_u32 s38, {opt['maxpoll']}\ns_cbranch_scc1 {L}\n{Le}:\ns_mov_b64 exec, 1")
    a(f"s_cmp_lg_u32 {IDX}, 0\ns_cbranch_scc1 {Ls}\nv_mov_b32 v{t}, {ep}\nbuffer_store_dword v{vep}, v{t}, {SRD}, 0 offen sc1\n{Ls}:\ns_mov_b64 exec, -1")
    a.free(t); a.free(f0); a.free(f1)


def helper_start(ep, vep, vL, first, last):
    t, j = a.v(), vep + 1
    a(f"v_mov_b32 v{t}, {ep}\nbuffer_load_dword v{vep}, v{t}, {SRD}, 0 offen sc1")
    if opt["prefetch"]:
        Lp = a.label("pc")
        a(f"s_getpc_b64 s[40:41]\n{Lp}:\ns_sub_u32 s40, s40, {Lp}-{first}\ns_subb_u32 s41, s41, 0\ns_mov_b32 s42, {last}-{first}\ns_mov_b32 s43, 0x20000")
        a(f"v_lshlrev_b32 v{t}, 7, v{vL}\ns_mov_b32 s38, 8192")
        a(f"buffer_load_dword v{j}, v{t}, s[40:43], 0 offen\nbuffer_load_dword v{j}, v{t}, s[40:43], s38 offen")
    a.free(t)


vL, vC, vG = a.v(), a.v(), a.v()
vt0, vt1 = a.v(), a.v()
a(f"""
s_load_dwordx16 s[4:19], s[0:1], 0
s_load_dwordx8 s[20:27], s[0:1], 64
s_load_dwordx4 s[28:31], s[0:1], 96
s_load_dwordx2 s[32:33], s[0:1], 112
s_cmp_ge_u32 s2, 256
s_cbranch_scc1 L_end
v_lshrrev_b32 v{vt0}, 6, v0
v_and_b32 v{vL}, 63, v0
s_and_b32 s38, s2, 7
v_readfirstlane_b32 {WV}, v{vt0}
s_bfe_u32 {IDX}, s2, 0x40003
s_lshl_b32 s38, s38, 4
s_add_u32 {IDX}, {IDX}, s38
s_lshl_b32 s39, {IDX}, 14
s_lshl_b32 s40, {IDX}, 10
s_cmp_ge_u32 s2, 128
s_cselect_b32 s39, s39, s40
s_cselect_b32 s40, 1, 0x80
s_lshl_b32 s40, s40, 10
s_lshl_b32 s38, {WV}, 7
s_add_u32 s39, s39, s38
s_lshl_b32 s41, {WV}, 11
s_mov_b32 m0, s41
v_lshrrev_b32 v{vt0}, 2, v{vL}
v_and_b32 v{vt0}, 4, v{vt0}
v_and_b32 v{vt1}, 7, v{vL}
v_xor_b32 v{vt0}, v{vt0}, v{vt1}
v_lshl_add_u32 v{vt0}, v{vt0}, 4, s39
v_lshrrev_b32 v{vt1}, 3, v{vL}
v_mad_u32_u24 v{vt0}, v{vt1}, s40, v{vt0}
s_lshl_b32 s40, s40, 3
s_sub_u32 s40, s40, 1024
v_xor_b32 v{vt1}, 32, v{vt0}
v_add_u32 v{vt1}, s40, v{vt1}
s_mov_b32 s34, {WS_SIZE}
s_mov_b32 s35, 0x20000
v_and_b32 v{vC}, 15, v{vL}
v_lshrrev_b32 v{vG}, 4, v{vL}
s_cmp_ge_u32 s2, 128
s_waitcnt lgkmcnt(0)
s_cselect_b64 s[42:43], {S_U}, {S_X}
s_cmp_eq_u32 {WV}, 8
s_cbranch_scc1 L_noload
global_load_lds_dwordx4 v{vt0}, s[42:43]{NT}
global_load_lds_dwordx4 v{vt1}, s[42:43] offset:1024{NT}
L_noload:
""")
stamp()
a("s_cmp_ge_u32 s2, 128\ns_cbranch_scc1 L_conv")
a.free(vt0); a.free(vt1)
common_free = set(a.vfree)
common_stamp = nstamp[0]

a("L_spec:")
vEp = a.v(2)
Lh = a.label("bh0")
a(f"s_cmp_lg_u32 {WV}, 8\ns_cbranch_scc1 {Lh}")
helper_start(WS_EB, vEp, vL, "L_spec", "L_conv")
z = a.v(4, 2); t = a.v()
a(f"v_mov_b32 v{z}, 0\nv_mov_b32 v{z+1}, 0\nv_mov_b32 v{z+2}, 0\nv_mov_b32 v{z+3}, 0\nv_lshlrev_b32 v{t}, 4, v{vL}")
a(f"ds_write_b128 v{t}, {vr(z,4)} offset:{T1+16*S1}\nds_write_b128 v{t}, {vr(z,4)} offset:{T1+16*S1+48}")
a.free(z, 4); a.free(t)
a(f"{Lh}:")
a(f"""
s_lshl_b32 s44, {WV}, 1
s_add_u32 s45, s44, 1
s_lshl_b32 s46, {WV}, 11
s_and_b32 s38, {WV}, 7
s_lshr_b32 s39, {WV}, 3
s_lshl_b32 s40, s39, 10
s_cmp_eq_u32 s38, 0
s_cselect_b32 s44, s39, s44
s_cselect_b32 s45, 16, s45
s_cselect_b32 s46, s40, s46
s_cselect_b32 s48, 1, 0
s_cselect_b32 s47, {OOB>>10}, 1
s_lshl_b32 s47, s47, 10
s_mov_b32 s49, 0
s_mov_b32 s50, s48
s_lshl_b32 s38, {IDX}, 14
s_add_u32 s46, s46, s38
s_add_u32 s47, s47, s46
""")
vR, vCq = a.v(), a.v()
fC, fG = a.v(), a.v()
a(f"v_bfe_u32 v{vR}, v{vL}, 2, 2\nv_and_b32 v{vCq}, 3, v{vL}\nv_cvt_f32_u32 v{fC}, v{vC}\nv_cvt_f32_u32 v{fG}, v{vG}")
vG1, vGh = a.v(), a.v()
a(f"v_and_b32 v{vG1}, 1, v{vG}\nv_lshrrev_b32 v{vGh}, 1, v{vG}")
fG1x8, fGhq = a.v(), a.v()
a(f"v_cvt_f32_u32 v{fG1x8}, v{vG1}\nv_cvt_f32_u32 v{fGhq}, v{vGh}\nv_mul_f32 v{fG1x8}, 0x41000000, v{fG1x8}\nv_mul_f32 v{fGhq}, 0x3e800000, v{fGhq}")

tc = a.v(16); ts = tc + 8
ang, stp = a.v(), a.v()
F1 = a.v(2)
a(f"""
v_lshrrev_b32 v{ang}, 1, v{vC}
v_and_b32 v{stp}, 1, v{vC}
v_cmp_eq_u32 vcc, 1, v{vC}
v_cvt_f32_u32 v{tc}, v{stp}
v_cndmask_b32 v{ang}, v{ang}, 8, vcc
v_mul_f32 v{tc}, 0x3e800000, v{tc}
v_cvt_f32_u32 v{stp}, v{ang}
v_cndmask_b32 v{tc}, v{tc}, 0, vcc
v_mul_f32 v{stp}, 0x3d800000, v{stp}
v_mul_f32 v{ang}, v{fG}, v{stp}
v_fma_f32 v{ang}, v{ang}, 4.0, v{tc}
""")
for i in range(4):
    a(f"v_cos_f32 v{tc+i}, v{ang}")
    if i < 3:
        a(f"v_add_f32 v{ang}, v{ang}, v{stp}")
cvt(F1, tc, tc + 1); cvt(F1 + 1, tc + 2, tc + 3)
B2re, B2im = a.v(4), a.v(4)
a(f"v_mul_f32 v{stp}, 0x3d800000, v{fC}\nv_fma_f32 v{ang}, v{fG1x8}, v{stp}, -v{fGhq}")
sincos_chain(8, ang, stp, tc, ts)
for i in range(4):
    cvt(B2re + i, tc + 2 * i, tc + 2 * i + 1)
    cvt(B2im + i, ts + 2 * i, ts + 2 * i + 1, True, True)
TW1c, TW1s = a.v(8), a.v(8)
ang2 = a.v()
a(f"v_mul_f32 v{stp}, 0x3b000000, v{fC}\nv_mul_f32 v{ang}, v{fG}, v{stp}\nv_mul_f32 v{ang}, 4.0, v{ang}\nv_fmamk_f32 v{ang2}, v{stp}, 0x41800000, v{ang}")
sincos_chain(4, ang, stp, TW1c, TW1s)
sincos_chain(4, ang2, stp, TW1c + 4, TW1s + 4)
COS = [a.v(4), a.v(4)]; SIN = [a.v(4), a.v(4)]; NSIN = [a.v(4), a.v(4)]
a(f"v_mul_f32 v{stp}, 0x3d000000, v{fC}\nv_mul_f32 v{ang}, v{fG}, v{stp}\nv_mul_f32 v{ang}, 4.0, v{ang}\nv_fmamk_f32 v{ang2}, v{stp}, 0x41800000, v{ang}")
sincos_chain(4, ang, stp, tc, ts)
sincos_chain(4, ang2, stp, tc + 4, ts + 4)
for i in range(4):
    cvt(COS[0] + i, tc + 2 * i, tc + 2 * i + 1)
    cvt(SIN[0] + i, ts + 2 * i, ts + 2 * i + 1)
    cvt(NSIN[0] + i, ts + 2 * i, ts + 2 * i + 1, True, True)
    cvt(COS[1] + i, tc + 2 * i, tc + 2 * i + 1, False, True)
    cvt(SIN[1] + i, ts + 2 * i, ts + 2 * i + 1, False, True)
    cvt(NSIN[1] + i, ts + 2 * i, ts + 2 * i + 1, True, False)

aX0, aX1, aT1w, aT1r, aOut = a.v(), a.v(), a.v(), a.v(), a.v()
t = a.v()
a(f"""
v_lshl_add_u32 v{t}, v{vG}, 2, v{vR}
v_lshlrev_b32 v{aX0}, 1, v{vR}
v_and_b32 v{aX0}, 4, v{aX0}
v_lshl_add_u32 v{aX0}, v{vGh}, 1, v{aX0}
v_xor_b32 v{aX0}, v{aX0}, v{vCq}
v_lshlrev_b32 v{aX0}, 4, v{aX0}
v_lshl_add_u32 v{aX0}, v{t}, 7, v{aX0}
v_add_u32 v{aX0}, s41, v{aX0}
v_xor_b32 v{aX1}, 64, v{aX0}
s_lshl_b32 s38, {WV}, 7
s_lshr_b32 s39, {WV}, 2
s_lshl_b32 s39, s39, 5
s_add_u32 s38, s38, s39
v_mul_u32_u24 v{aT1w}, {S1}, v{vC}
v_lshl_add_u32 v{aT1w}, v{vG}, 4, v{aT1w}
v_add_u32 v{aT1w}, s38, v{aT1w}
s_mul_i32 s38, s44, {S1}
s_mul_i32 s39, s45, {S1}
s_sub_u32 s39, s39, s38
v_mul_u32_u24 v{aT1r}, 544, v{vG1}
v_lshl_add_u32 v{aT1r}, v{vR}, 6, v{aT1r}
v_lshl_add_u32 v{aT1r}, v{vCq}, 3, v{aT1r}
v_mad_u32_u24 v{aT1r}, v{vGh}, s39, v{aT1r}
v_add_u32 v{aT1r}, s38, v{aT1r}
v_lshlrev_b32 v{aOut}, 6, v{vC}
v_lshl_add_u32 v{aOut}, v{vG}, 4, v{aOut}
""")
a.free(t)
stamp()
L1 = a.label("bs1")
a(f"s_cmp_eq_u32 {WV}, 8\ns_cbranch_scc1 {L1}\ns_waitcnt vmcnt(0)")
A = a.v(8); D = a.v(16); P4 = a.v(8)
for p in range(2):
    for e in range(2):
        a(f"ds_read_b64_tr_b16 {vr(A+4*p+2*e,2)}, v{aX1 if p else aX0} offset:{XT+8*e}")
for i in range(4):
    a(f"s_waitcnt lgkmcnt({3-i})")
    mfma16(D + 4 * i, A + 2 * i, F1)
for p in range(2):
    for i in range(4):
        cvt(P4 + 4 * p + i, D + 8 * p + 2 * i, D + 8 * p + 2 * i + 1)
    a(f"ds_write_b128 v{aT1w}, {vr(P4+4*p,4)} offset:{T1+64*p}")
a(f"{L1}:\ns_waitcnt lgkmcnt(0)\ns_barrier")
stamp()
for tau in range(2):
    for h in range(2):
        a(f"ds_read_b64_tr_b16 {vr(A+4*tau+2*h,2)}, v{aT1r} offset:{T1+256*h+32*tau}")
for tau in range(2):
    a(f"s_waitcnt lgkmcnt({2-2*tau})")
    mfma32(D + 8 * tau, A + 4 * tau, B2re, None)
    mfma32(D + 8 * tau + 4, A + 4 * tau, B2im, None)
tmp = a.v(4)
A3 = P4
for tau in range(2):
    for pr in range(2):
        for i in range(2):
            r = 2 * pr + i
            cmul(tmp + i, tmp + 2 + i, D + 8 * tau + r, D + 8 * tau + 4 + r, TW1c + 4 * tau + r, TW1s + 4 * tau + r, True)
        cvt(A3 + 2 * tau + pr, tmp, tmp + 1)
        cvt(A3 + 4 + 2 * tau + pr, tmp + 2, tmp + 3)
D3 = a.v(16)
for tt in range(2):
    mfma32(D3 + 8 * tt, A3, COS[tt], None)
    mfma32(D3 + 8 * tt + 4, A3, NSIN[tt], None)
for tt in range(2):
    mfma32(D3 + 8 * tt, A3 + 4, SIN[tt], D3 + 8 * tt)
    mfma32(D3 + 8 * tt + 4, A3 + 4, COS[tt], D3 + 8 * tt + 4)
a(f"""
s_lshr_b32 s38, {IDX}, 4
s_and_b32 s39, {IDX}, 7
s_bfe_u32 s40, {IDX}, 0x10003
s_lshl_b32 s51, s40, 3
s_cmp_eq_u32 s38, 0
s_cselect_b32 s51, s51, s38
s_cselect_b32 s40, 0, s40
s_mul_i32 s52, s51, 514
s_lshl_b32 s42, s39, 6
s_add_u32 s52, s52, s42
s_sub_u32 s43, {2048*514 + 2*(256-31)}, s52
s_lshl_b32 s55, {WV}, 3
s_sub_u32 s42, 56, s55
s_cmp_eq_u32 s40, 0
s_cselect_b32 s52, s52, s43
s_cselect_b32 s53, 1, -1
s_cselect_b32 s54, 0, 0x80008000
s_cselect_b32 s55, s55, s42
s_cselect_b32 s42, 0, 0x06060000
s_mul_i32 s53, s53, 8224
s_xor_b32 s56, s42, 0x01000c0c
s_xor_b32 s57, s42, 0x03020c0c
s_xor_b32 s58, s42, 0x05040c0c
s_xor_b32 s59, s42, 0x07060c0c
""")
a(f"v_cndmask_b32 v{D3+4}, v{D3+4}, v{D3+8}, s[48:49]")
GX = A
for tt in range(2):
    for i in range(4):
        cvt(GX + 4 * tt + i, D3 + 8 * tt + 2 * i, D3 + 8 * tt + 2 * i + 1)
    a(f"buffer_store_dwordx4 {vr(GX+4*tt,4)}, v{aOut}, {SRD}, s{46+tt} offen sc1")
old0, old1 = a.v(), a.v()
a(f"v_mov_b32 v{old0}, v{GX}\nv_or_b32 v{old1}, s50, v{GX+4}")
for r_, n_ in ((D, 16), (D3, 16), (P4, 8), (tmp, 4), (F1, 2), (B2re, 4), (B2im, 4), (TW1c, 8), (TW1s, 8), (aX0, 1), (aX1, 1), (aT1w, 1), (aT1r, 1)):
    a.free(r_, n_)
stamp()

LH = a.label("bhelp"); LP3 = a.label("bp3")
a(f"s_cmp_eq_u32 {WV}, 8\ns_cbranch_scc1 {LH}")
WRAW = a.v(8)
aW = a.v(); t = a.v()
a(f"v_and_b32 v{t}, 3, v0\nv_lshl_add_u32 v{t}, v{t}, 4, s52\nv_lshrrev_b32 v{aW}, 2, v0\nv_mad_i32_i24 v{t}, v{aW}, s53, v{t}")
a(f"global_load_dwordx4 {vr(WRAW,4)}, v{t}, {S_WR}{NT}\nglobal_load_dwordx4 {vr(WRAW+4,4)}, v{t}, {S_WI}{NT}")
a(f"v_mul_u32_u24 v{aW}, 80, v{aW}\nv_and_b32 v{t}, 3, v0\nv_lshl_add_u32 v{aW}, v{t}, 4, v{aW}")
a.free(t)
a.free(A, 8)
fF = a.v()
a(f"v_cvt_f32_u32 v{ang}, s51\nv_fmamk_f32 v{fF}, v{fC}, 0x41800000, v{ang}")
B1re, B1im = a.v(4), a.v(4)
a(f"v_mul_f32 v{stp}, 0x3b800000, v{fF}\nv_fma_f32 v{ang2}, v{fG1x8}, v{stp}, -v{fGhq}")
sincos_chain(8, ang2, stp, tc, ts)
for i in range(4):
    cvt(B1re + i, tc + 2 * i, tc + 2 * i + 1)
    cvt(B1im + i, ts + 2 * i, ts + 2 * i + 1, True, True)
TWa = a.v(4)
a(f"v_mul_f32 v{stp}, 0x3a000000, v{fF}\nv_mul_f32 v{ang2}, v{fG}, v{stp}\nv_mul_f32 v{stp}, 4.0, v{stp}")
sincos_chain(2, ang2, stp, TWa, TWa + 2)
A2 = a.v(2)
fH, fO = a.v(), a.v()
a(f"v_lshrrev_b32 v{fH}, 1, v{vC}\nv_and_b32 v{fO}, 1, v{vC}\nv_cvt_f32_u32 v{fH}, v{fH}\nv_cvt_f32_u32 v{fO}, v{fO}")
for i in range(4):
    a(f"v_mul_f32 v{TWa+i}, {f2u(2.0**-19)}, v{TWa+i}")
a(f"v_mul_f32 v{stp}, 0x3e000000, v{fH}\nv_mul_f32 v{ang2}, 0x3e800000, v{fO}\nv_fmac_f32 v{ang2}, v{fG}, v{stp}\nv_mul_f32 v{tc+7}, 4.0, v{stp}")
sincos_chain(2, ang2, tc + 7, tc, ts)
B3re, B3im = a.v(4), a.v(4)
a(f"v_mul_f32 v{ang2}, v{fG}, v{stp}\nv_add_f32 v{ang2}, v{ang2}, v{ang2}")
cvt(A2, tc, ts); cvt(A2 + 1, tc + 1, ts + 1)
sincos_chain(2, ang2, stp, tc, ts)
m0_, m1_ = tc + 6, tc + 7
a(f"v_and_b32 v{m0_}, 1, v{vC}\nv_add_u32 v{m0_}, -1, v{m0_}\nv_not_b32 v{m1_}, v{m0_}")
for l in range(2):
    cvt(tc + 2 + l, tc + l, ts + l, False, True)
    cvt(ts + 2 + l, ts + l, tc + l)
for l in range(2):
    a(f"v_and_b32 v{B3re+l}, v{m0_}, v{tc+2+l}\nv_and_b32 v{B3re+2+l}, v{m1_}, v{tc+2+l}")
    a(f"v_and_b32 v{B3im+l}, v{m0_}, v{ts+2+l}\nv_and_b32 v{B3im+2+l}, v{m1_}, v{ts+2+l}")
TWbc, TWbs = a.v(4), a.v(4)
a(f"v_fmamk_f32 v{fF}, v{fG}, 0x42800000, v{ang}")
a(f"v_mul_f32 v{stp}, 0x3a000000, v{fH}\nv_mul_f32 v{ang2}, v{fF}, v{stp}\nv_mul_f32 v{stp}, 0x41800000, v{stp}")
sincos_chain(4, ang2, stp, TWbc, TWbs)
B4 = a.v(6)
a(f"v_mul_f32 v{stp}, 0x3b800000, v{fC}\nv_mul_f32 v{ang2}, v{fF}, v{stp}\nv_mul_f32 v{stp}, 0x41800000, v{stp}")
sincos_chain(4, ang2, stp, tc, ts)
for i in range(2):
    cvt(B4 + i, ts + 2 * i, ts + 2 * i + 1)
    cvt(B4 + 2 + i, tc + 2 * i, tc + 2 * i + 1)
    cvt(B4 + 4 + i, ts + 2 * i, ts + 2 * i + 1, True, True)
a.free(fF); a.free(fH); a.free(fO)
aG, aXSw, aXSr, aWr, aZw, aZr = [a.v() for _ in range(6)]
t, t2 = a.v(), a.v()
a(f"""
v_lshrrev_b32 v{t}, 3, v0
v_and_b32 v{t2}, 7, v0
v_lshlrev_b32 v{aG}, 14, v{t}
v_lshl_add_u32 v{aG}, v{t2}, 4, v{aG}
v_mul_u32_u24 v{aXSw}, 144, v{t}
v_lshl_add_u32 v{aXSw}, v{t2}, 4, v{aXSw}
v_xor_b32 v{t2}, {WV}, v{t2}
v_lshlrev_b32 v{aZr}, 7, v{t}
v_lshl_add_u32 v{aZr}, v{t2}, 4, v{aZr}
v_lshrrev_b32 v{t}, 4, v{t}
v_lshl_add_u32 v{aXSw}, v{t}, 6, v{aXSw}
v_mul_u32_u24 v{aXSr}, {144*64+256}, v{vG1}
v_mul_u32_u24 v{t}, {144*8}, v{vR}
v_mul_u32_u24 v{t2}, 144, v{vCq}
v_add3_u32 v{aXSr}, v{aXSr}, v{t}, v{t2}
v_lshrrev_b32 v{t}, 1, v{vR}
v_lshl_add_u32 v{aXSr}, v{t}, 6, v{aXSr}
v_lshl_add_u32 v{aXSr}, v{vGh}, 3, v{aXSr}
s_lshl_b32 s38, {WV}, 4
v_add_u32 v{aXSr}, s38, v{aXSr}
v_lshl_add_u32 v{aWr}, v{vG}, 5, v{vC}
v_mul_u32_u24 v{aWr}, 80, v{aWr}
v_add_u32 v{aWr}, s55, v{aWr}
v_and_b32 v{t}, 7, v{vC}
v_xor_b32 v{t}, {WV}, v{t}
v_lshlrev_b32 v{aZw}, 10, v{vC}
v_lshl_add_u32 v{aZw}, v{vG}, 8, v{aZw}
v_lshl_add_u32 v{aZw}, v{t}, 4, v{aZw}
s_lshl_b32 s60, {IDX}, 7
s_add_u32 s61, s60, 0x100000
""")
SP = tc
for r_ in (fG1x8, fGhq, vG1, vGh, ang, stp, ang2):
    a.free(r_)
Lns, Lsd = a.label("nospec"), a.label("specdone")
a(f"s_and_b32 s38, {IDX}, 7\ns_or_b32 s62, s38, {WV}\ns_cmp_lg_u32 s62, 0\ns_cbranch_scc1 {Lns}")
for b in range(2):
    a(f"v_lshl_add_u32 v{t}, v{vG}, 5, v{vC}\nv_lshlrev_b32 v{t}, 4, v{t}\nv_add_u32 v{t}, s51, v{t}")
    if b:
        a(f"v_add_u32 v{t}, 256, v{t}")
    a(f"v_sub_u32 v{t2}, 2048, v{t}\nv_and_b32 v{t2}, 2047, v{t2}\nv_mul_u32_u24 v{t}, 514, v{t}\nv_mul_u32_u24 v{t2}, 514, v{t2}")
    for j, (ad, off) in enumerate(((t, 0), (t2, 0), (t, 512), (t2, 512))):
        a(f"global_load_ushort v{SP+8*b+2*j}, v{ad}, {S_WR} offset:{off}\nglobal_load_ushort v{SP+8*b+2*j+1}, v{ad}, {S_WI} offset:{off}")
a(f"s_waitcnt vmcnt(18)\ns_branch {Lsd}\n{Lns}:\ns_waitcnt vmcnt(2)\n{Lsd}:")
a.free(t); a.free(t2)
stamp()
a("s_barrier")
a("s_barrier")
stamp()
GI = a.v(8)
a(f"buffer_load_dwordx4 {vr(GI,4)}, v{aG}, {SRD}, s60 offen sc1\nbuffer_load_dwordx4 {vr(GI+4,4)}, v{aG}, {SRD}, s61 offen sc1")
a("s_waitcnt vmcnt(2)")
for i in range(4):
    a(f"v_xor_b32 v{WRAW+4+i}, s54, v{WRAW+4+i}")
a(f"ds_write_b128 v{aW}, {vr(WRAW,4)} offset:{WSL}\nds_write_b128 v{aW}, {vr(WRAW+4,4)} offset:{WSL+10240}")
Lns2 = a.label("nospec")
MA = a.v(4)
a(f"s_cmp_lg_u32 s62, 0\ns_cbranch_scc1 {Lns2}")
a(f"""
s_lshr_b32 s38, {IDX}, 4
s_cmp_eq_u32 s54, 0
s_cselect_b32 s39, 0.5, 0
s_cselect_b32 s40, 0, 0.5
s_cmp_eq_u32 s38, 0
s_cselect_b32 s39, {f2u(0.125)}, s39
s_cselect_b32 s40, {f2u(0.125)}, s40
s_cselect_b32 s42, {f2u(0.125)}, 0
""")
for i in range(16):
    a(f"v_lshlrev_b32 v{SP+i}, 16, v{SP+i}")
for b in range(2):
    s = SP + 8 * b
    a(f"v_add_f32 v{s}, v{s}, v{s+2}\nv_sub_f32 v{s+1}, v{s+1}, v{s+3}\nv_add_f32 v{s+4}, v{s+4}, v{s+6}\nv_sub_f32 v{s+5}, v{s+5}, v{s+7}")
    a(f"v_sub_f32 v{s+2}, v{s}, v{s+4}\nv_sub_f32 v{s+3}, v{s+1}, v{s+5}\nv_mul_f32 v{s+2}, s42, v{s+2}\nv_mul_f32 v{s+3}, s42, v{s+3}")
    a(f"v_mul_f32 v{s}, s39, v{s}\nv_mul_f32 v{s+1}, s39, v{s+1}\nv_fmac_f32 v{s}, s40, v{s+4}\nv_fmac_f32 v{s+1}, s40, v{s+5}")
a("s_lshr_b32 s38, s51, 3\ns_sub_u32 s38, 128, s38")
for b in range(2):
    s = SP + 8 * b
    a(f"v_lshl_add_u32 v{s+4}, v{vG}, 5, v{vC}\nv_sub_u32 v{s+4}, s38, v{s+4}")
    if b:
        a(f"v_add_u32 v{s+4}, -16, v{s+4}")
    a(f"v_and_b32 v{s+5}, 15, v{s+4}\nv_bfe_u32 v{s+6}, v{s+4}, 5, 2\nv_lshl_add_u32 v{s+5}, v{s+6}, 4, v{s+5}\nv_lshlrev_b32 v{MA+b}, 2, v{s+5}\nv_bfe_u32 v{MA+2+b}, v{s+4}, 4, 1")
a(f"{Lns2}:")
a("s_waitcnt vmcnt(0)")
a(f"ds_write_b128 v{aXSw}, {vr(GI,4)} offset:{XS}\nds_write_b128 v{aXSw}, {vr(GI+4,4)} offset:{XS+9472}")
nold0, nold1 = a.v(), a.v()
a(f"v_not_b32 v{nold0}, v{GI}\nv_not_b32 v{nold1}, v{GI+4}")
a("s_waitcnt lgkmcnt(0)\ns_barrier")
stamp()
A1 = GI
for tau in range(2):
    for h in range(2):
        a(f"ds_read_b64_tr_b16 {vr(A1+4*tau+2*h,2)}, v{aXSr} offset:{XS+4736*h+576*tau}")
for part in range(2):
    for b in range(2):
        a(f"ds_read_b64 {vr(WRAW+4*part+2*b,2)}, v{aWr} offset:{WSL+10240*part+1280*b}")
D = a.v(16); D2 = a.v(16); tmp = a.v(4); BQ = a.v(8)
for tau in range(2):
    a(f"s_waitcnt lgkmcnt({6-2*tau})")
    mfma32(D + 8 * tau, A1 + 4 * tau, B1re, None)
    mfma32(D + 8 * tau + 4, A1 + 4 * tau, B1im, None)
for q in range(4):
    for tau in range(2):
        cmul(tmp + 2 * tau, tmp + 2 * tau + 1, D + 8 * tau + q, D + 8 * tau + 4 + q, TWa + tau, TWa + 2 + tau, True)
    for tau in range(2):
        cvt(BQ + 2 * q + tau, tmp + 2 * tau, tmp + 2 * tau + 1)
    if q:
        mfma16(D2 + 4 * (q - 1), A2, BQ + 2 * (q - 1))
mfma16(D2 + 12, A2, BQ + 6)
WU = D
a("s_waitcnt lgkmcnt(0)")
for q in range(4):
    for b in range(2):
        for part in range(2):
            w_ = WRAW + 4 * part + 2 * b
            a(f"v_perm_b32 v{WU+4*q+2*b+part}, v{w_+1}, v{w_}, s{56+q}")
Lns3 = a.label("nospec")
MB = WRAW
a(f"s_cmp_lg_u32 s62, 0\ns_cbranch_scc1 {Lns3}")
for b in range(2):
    for i in range(4):
        a(f"ds_bpermute_b32 v{MB+4*b+i}, v{MA+b}, v{D2+i}")
for b in range(2):
    a(f"v_mov_b32 v{WU+2*b}, v{SP+8*b}\nv_mov_b32 v{WU+2*b+1}, v{SP+8*b+1}")
a(f"{Lns3}:")
AI = A1
for q in (1, 2, 3, 0):
    for b in range(2):
        cmul(tmp + 2 * b, tmp + 2 * b + 1, D2 + 4 * q + 2 * b, D2 + 4 * q + 2 * b + 1, WU + 4 * q + 2 * b, WU + 4 * q + 2 * b + 1, False)
    if q == 0:
        Lns4 = a.label("nospec")
        a(f"s_cmp_lg_u32 s62, 0\ns_cbranch_scc1 {Lns4}\ns_waitcnt lgkmcnt(0)")
        for b in range(2):
            s = SP + 8 * b
            a(f"v_cmp_eq_u32 vcc, 1, v{MA+2+b}\nv_cndmask_b32 v{MB+4*b}, v{MB+4*b}, v{MB+4*b+2}, vcc\nv_cndmask_b32 v{MB+4*b+1}, v{MB+4*b+1}, v{MB+4*b+3}, vcc")
            a(f"v_fmac_f32 v{tmp+2*b}, v{MB+4*b}, v{s+2}\nv_fmac_f32 v{tmp+2*b+1}, v{MB+4*b}, v{s+3}")
            a(f"v_fmac_f32 v{tmp+2*b}, v{MB+4*b+1}, v{s+3}\nv_fma_f32 v{tmp+2*b+1}, -v{MB+4*b+1}, v{s+2}, v{tmp+2*b+1}")
        a(f"{Lns4}:")
    for b in range(2):
        cvt(AI + 2 * q + b, tmp + 2 * b, tmp + 2 * b + 1)
    if q == 3:
        mfma32(D + 8, AI + 4, B3re, None)
        mfma32(D + 12, AI + 4, B3im, None)
mfma32(D2, AI, B3re, None)
mfma32(D2 + 4, AI, B3im, None)
A4 = BQ
D4 = (D2 + 8, D)
for p2, src in ((1, D + 8), (0, D2)):
    for pr in range(2):
        for i in range(2):
            r = 2 * pr + i
            cmul(tmp + i, tmp + 2 + i, src + r, src + 4 + r, TWbc + r, TWbs + r, False)
        cvt(A4 + 4 * p2 + pr, tmp, tmp + 1)
        cvt(A4 + 4 * p2 + 2 + pr, tmp + 2, tmp + 3)
    mfma32(D4[p2], A4 + 4 * p2, B4 + 2, None)
    mfma32(D4[p2] + 4, A4 + 4 * p2, B4, None)
GO = GI
for b in range(2):
    cvt(GO + 4 * b + 1, D4[1] + 2 * b, D4[1] + 2 * b + 1)
    cvt(GO + 4 * b + 3, D4[1] + 4 + 2 * b, D4[1] + 4 + 2 * b + 1)
for b in range(2):
    cvt(GO + 4 * b, D4[0] + 2 * b, D4[0] + 2 * b + 1)
    cvt(GO + 4 * b + 2, D4[0] + 4 + 2 * b, D4[0] + 4 + 2 * b + 1)
    a(f"ds_write_b128 v{aZw}, {vr(GO+4*b,4)} offset:{ZS+128*b}")
a("s_waitcnt lgkmcnt(0)\ns_barrier")
a(f"ds_read_b128 {vr(GO,4)}, v{aZr} offset:{ZS}\nds_read_b128 {vr(GO+4,4)}, v{aZr} offset:{ZS+8192}")
a(f"s_waitcnt lgkmcnt(1)\nv_bfi_b32 v{GO}, 1, v{nold0}, v{GO}\nbuffer_store_dwordx4 {vr(GO,4)}, v{aG}, {SRD}, s60 offen sc1")
a(f"s_waitcnt lgkmcnt(0)\nv_bfi_b32 v{GO+4}, 1, v{nold1}, v{GO+4}\nbuffer_store_dwordx4 {vr(GO+4,4)}, v{aG}, {SRD}, s61 offen sc1")
a(f"s_branch {LP3}")
for r_, n_ in ((D, 16), (D2, 16), (tmp, 4), (BQ, 8), (GI, 8), (WRAW, 8), (MA, 4), (B1re, 4), (B1im, 4), (TWa, 4), (A2, 2),
               (B3re, 4), (B3im, 4), (TWbc, 4), (TWbs, 4), (B4, 6), (aW, 1), (aG, 1), (aXSw, 1), (aXSr, 1), (aWr, 1), (aZw, 1), (aZr, 1), (nold0, 1), (nold1, 1)):
    a.free(r_, n_)
sv = nstamp[0]
nstamp[0] = sv - 3 if STAMP else 0
a(f"{LH}:\ns_waitcnt vmcnt(0)\nv_add_u32 v{vEp}, 1, v{vEp}")
stamp()
a("s_barrier")
helper_flags(WS_FLB, WS_EB, vEp)
helper_poll(WS_FLB, WS_EB, vEp, vL)
a("s_barrier")
stamp()
a("s_barrier")
stamp()
a("s_barrier")
a(f"{LP3}:")
stamp()
TW3c, TW3s = a.v(8), a.v(8)
ang, stp, ang2 = a.v(), a.v(), a.v()
a(f"v_mul_f32 v{stp}, 0x3b000000, v{fC}\nv_mul_f32 v{ang}, v{fG}, v{stp}\nv_mul_f32 v{ang}, 4.0, v{ang}")
sincos_chain(4, ang, stp, TW3c, TW3s)
a(f"v_add_f32 v{stp}, 0x3d000000, v{stp}\nv_mul_f32 v{ang}, v{fG}, v{stp}\nv_mul_f32 v{ang}, 4.0, v{ang}")
sincos_chain(4, ang, stp, TW3c + 4, TW3s + 4)
B6 = a.v(6)
a(f"v_mul_f32 v{stp}, 0x3d800000, v{fC}\nv_mul_f32 v{ang}, v{fG}, v{stp}\nv_mul_f32 v{ang}, 4.0, v{ang}")
sincos_chain(4, ang, stp, tc, ts)
for i in range(2):
    cvt(B6 + i, ts + 2 * i, ts + 2 * i + 1)
    cvt(B6 + 2 + i, tc + 2 * i, tc + 2 * i + 1)
    cvt(B6 + 4 + i, ts + 2 * i, ts + 2 * i + 1, True, True)
F2 = a.v(2)
a(f"""
v_mul_f32 v{ang}, v{fG}, v{stp}
v_add_f32 v{ang}, v{ang}, v{ang}
v_add_f32 v{ang2}, v{ang}, v{stp}
v_cos_f32 v{tc}, v{ang}
v_sin_f32 v{tc+1}, v{ang}
v_cos_f32 v{tc+2}, v{ang2}
v_sin_f32 v{tc+3}, v{ang2}
v_mul_f32 v{ang}, 0.5, v{fC}
v_cos_f32 v{tc+4}, v{ang}
v_cmp_eq_u32 vcc, 0, v{vG}
v_cndmask_b32 v{tc+1}, v{tc+1}, -v{tc+4}, vcc
""")
cvt(F2, tc, tc + 1, False, True); cvt(F2 + 1, tc + 2, tc + 3, False, True)
aZTw, aZTr, aT2a, aT2b, aT2r, aO = [a.v() for _ in range(6)]
t = a.v()
a(f"""
s_mul_i32 s38, {WV}, 2560
v_mul_u32_u24 v{aZTw}, 40, v{vC}
v_lshl_add_u32 v{aZTw}, v{vG}, 3, v{aZTw}
v_add_u32 v{aZTw}, s38, v{aZTw}
v_lshl_add_u32 v{t}, v{vG}, 2, v{vR}
v_mul_u32_u24 v{aZTr}, 40, v{t}
v_lshl_add_u32 v{aZTr}, v{vCq}, 3, v{aZTr}
v_add_u32 v{aZTr}, s38, v{aZTr}
s_mul_i32 s38, s44, {S2}
s_mul_i32 s39, s45, {S2}
v_mul_u32_u24 v{aT2a}, 72, v{vC}
v_lshl_add_u32 v{aT2a}, v{vG}, 3, v{aT2a}
v_add_u32 v{aT2b}, s39, v{aT2a}
v_add_u32 v{aT2a}, s38, v{aT2a}
s_mul_i32 s38, {WV}, 144
v_mul_u32_u24 v{aT2r}, {S2}, v{t}
v_lshl_add_u32 v{aT2r}, v{vCq}, 4, v{aT2r}
v_add_u32 v{aT2r}, s38, v{aT2r}
s_lshl_b32 s38, {IDX}, 11
s_lshl_b32 s39, {WV}, 7
s_add_u32 s38, s38, s39
s_add_u32 s38, s38, 1024
v_lshlrev_b32 v{aO}, 18, v{vC}
v_lshl_add_u32 v{aO}, v{vG}, 4, v{aO}
v_add_u32 v{aO}, s38, v{aO}
s_waitcnt vmcnt(0)
""")
if opt["pslp"]:
    a(f"s_sleep {opt['pslp']}")
stamp()
GZ = a.v(8)
poll_toggle(GZ, GZ + 4, aOut, "s46", "s47", old0, old1)
stamp()
a(f"v_and_b32 v{t}, 0xffff, v{GZ+2}\nv_cndmask_b32 v{GZ+4}, v{GZ+4}, v{t}, s[48:49]")
a.free(t)
for tt in range(2):
    for part in range(2):
        a(f"ds_write_b64 v{aZTw}, {vr(GZ+4*tt+2*part,2)} offset:{ZT+640*tt+1280*part}")
A5 = a.v(8)
for part in range(2):
    for h in range(2):
        a(f"ds_read_b64_tr_b16 {vr(A5+4*part+2*h,2)}, v{aZTr} offset:{ZT+640*h+1280*part}")
D = a.v(16); D3 = a.v(16); tmp = a.v(4)
a("s_waitcnt lgkmcnt(2)")
for tau in range(2):
    mfma32(D + 8 * tau, A5, COS[tau], None)
    mfma32(D + 8 * tau + 4, A5, SIN[tau], None)
a("s_waitcnt lgkmcnt(0)")
for tau in range(2):
    mfma32(D + 8 * tau, A5 + 4, NSIN[tau], D + 8 * tau)
    mfma32(D + 8 * tau + 4, A5 + 4, COS[tau], D + 8 * tau + 4)
A6 = GZ
for tau in range(2):
    for pr in range(2):
        for i in range(2):
            r = 2 * pr + i
            cmul(tmp + i, tmp + 2 + i, D + 8 * tau + r, D + 8 * tau + 4 + r, TW3c + 4 * tau + r, TW3s + 4 * tau + r, False)
        cvt(A6 + 4 * tau + pr, tmp, tmp + 1)
        cvt(A6 + 4 * tau + 2 + pr, tmp + 2, tmp + 3)
    mfma32(D3 + 8 * tau, A6 + 4 * tau, B6 + 2, None)
    mfma32(D3 + 8 * tau + 4, A6 + 4 * tau, B6, None)
for tau in range(2):
    for part in range(2):
        o_ = A5 + 4 * tau + 2 * part
        cvt(o_, D3 + 8 * tau + 4 * part, D3 + 8 * tau + 4 * part + 1)
        cvt(o_ + 1, D3 + 8 * tau + 4 * part + 2, D3 + 8 * tau + 4 * part + 3)
        a(f"ds_write_b64 v{aT2b if part else aT2a}, {vr(o_,2)} offset:{T2+32*tau}")
a(f"s_waitcnt lgkmcnt(0)\ns_barrier")
stamp()
a(f"s_cmp_eq_u32 {WV}, 8\ns_cbranch_scc1 L_fin")
for p in range(2):
    for e in range(2):
        a(f"ds_read_b64_tr_b16 {vr(A5+4*p+2*e,2)}, v{aT2r} offset:{T2+72*p+8*e}")
for i in range(4):
    a(f"s_waitcnt lgkmcnt({3-i})")
    mfma16(D + 4 * i, A5 + 2 * i, F2)
for p in range(2):
    for i in range(4):
        cvt(GZ + 4 * p + i, D + 8 * p + 2 * i, D + 8 * p + 2 * i + 1)
    a(f"global_store_dwordx4 v{aO}, {vr(GZ+4*p,4)}, {S_OUT} offset:{64*p} sc1")
stamp()
if STAMP:
    a("s_waitcnt vmcnt(0)")
stamp()
a("s_branch L_fin")
vmax_spec = a.vmax

a.vfree = set(common_free)
a.vmax = 0
nstamp[0] = common_stamp
a(".p2align 6\nL_conv:")
vEp = a.v(2)
LH = a.label("ahelp")
a(f"s_cmp_eq_u32 {WV}, 8\ns_cbranch_scc1 {LH}")
PR = a.v(7); DSK = a.v(2)
t, t2 = a.v(), a.v()
vG1, vGh = a.v(), a.v()
a(f"""
s_lshr_b32 s44, {WV}, 1
s_lshl_b32 s38, {IDX}, 2
s_add_u32 s38, s38, s44
s_lshl_b32 s39, s38, 8
s_and_b32 s40, {WV}, 1
s_lshl_b32 s40, s40, 7
s_add_u32 s39, s39, s40
v_lshl_add_u32 v{t}, v{vL}, 1, s39
s_lshl_b32 s38, s38, 1
v_mov_b32 v{t2}, s38
""")
a(f"global_load_ushort v{PR+6}, v{t2}, {S_LDT}")
for i, s in enumerate((S_ARE, S_AIM, S_BRE, S_BIM, S_CRE, S_CIM)):
    a(f"global_load_ushort v{PR+i}, v{t}, {s}{NT}")
a(f"""
v_and_b32 v{vG1}, 1, v{vG}
v_lshrrev_b32 v{vGh}, 1, v{vG}
s_lshl_b32 s38, {WV}, 7
v_lshl_add_u32 v{t}, v{vGh}, 4, v{vC}
v_lshl_add_u32 v{t}, v{t}, 1, s38
global_load_ushort v{DSK}, v{t}, {S_DSK}
global_load_ushort v{DSK+1}, v{t}, {S_DSK} offset:64
""")
z = a.v(4)
a(f"v_mov_b32 v{z}, 0\nv_mov_b32 v{z+1}, 0\nv_mov_b32 v{z+2}, 0\nv_mov_b32 v{z+3}, 0\nv_lshlrev_b32 v{t}, 4, v0")
a(f"ds_write_b128 v{t}, {vr(z,4)} offset:{KC}\nds_write_b128 v{t}, {vr(z,4)} offset:{KC+8192}")
a(f"v_lshrrev_b32 v{t}, 7, v0\nv_mul_u32_u24 v{t}, {UTS}, v{t}\nv_and_b32 v{t2}, 127, v0\nv_lshl_add_u32 v{t}, v{t2}, 2, v{t}\nds_write_b32 v{t}, v{z} offset:{UT}")
a.free(z, 4)
vR, vCq = a.v(), a.v()
aU0, aU1, aUo = a.v(), a.v(), a.v()
a(f"""
v_bfe_u32 v{vR}, v{vL}, 2, 2
v_and_b32 v{vCq}, 3, v{vL}
v_lshlrev_b32 v{t}, 1, v{vR}
v_and_b32 v{t}, 4, v{t}
v_lshl_add_u32 v{t}, v{vG1}, 1, v{t}
v_lshrrev_b32 v{t2}, 1, v{vCq}
v_lshl_add_u32 v{t2}, v{vGh}, 1, v{t2}
v_xor_b32 v{t}, v{t}, v{t2}
v_lshlrev_b32 v{aU0}, 4, v{t}
v_and_b32 v{t}, 1, v{vCq}
v_lshl_add_u32 v{aU0}, v{t}, 3, v{aU0}
v_lshl_add_u32 v{t}, v{vG1}, 3, v{vR}
v_lshl_add_u32 v{aU0}, v{t}, 7, v{aU0}
v_add_u32 v{aU0}, s41, v{aU0}
v_xor_b32 v{aU1}, 64, v{aU0}
v_lshrrev_b32 v{t}, 2, v{vC}
v_lshl_add_u32 v{t}, v{vGh}, 2, v{t}
v_lshlrev_b32 v{aUo}, 7, v{t}
v_lshl_add_u32 v{aUo}, v{vG1}, 6, v{aUo}
v_and_b32 v{t}, 3, v{vC}
v_lshl_add_u32 v{aUo}, v{t}, 4, v{aUo}
s_lshl_b32 s46, {IDX}, 14
s_add_u32 s46, s46, s41
s_add_u32 s46, s46, {WS_U}
""")
EX = a.v(9)
a(f"v_and_b32 v{t}, 255, v0\nv_lshlrev_b32 v{t}, 3, v{t}\nv_sub_u32 v{t}, 2047, v{t}\nv_lshrrev_b32 v{t2}, 8, v0\nv_mul_u32_u24 v{t2}, {2*KCS}, v{t2}")
t3 = a.v(2)
for e in range(9):
    a(f"""
v_cvt_f32_i32 v{t3}, v{t}
v_cmp_gt_i32 vcc, 128, v{t}
v_cvt_pk_bf16_f32 v{t3}, v{t3}, v{t3}
v_and_b32 v{t3}, 0xffff, v{t3}
v_add_u32 v{t3}, {128-(134<<7)}, v{t3}
v_cndmask_b32 v{t3}, v{t3}, v{t}, vcc
""")
    if e == 8:
        a(f"v_min_u32 v{t3}, 768, v{t3}")
    a(f"v_lshl_add_u32 v{EX+e}, v{t3}, 2, v{t2}")
    if e < 8:
        a(f"v_add_u32 v{t}, -1, v{t}")
a.free(t3, 2)
a("s_waitcnt lgkmcnt(0)\ns_barrier")
stamp()
UG = a.v(8)
a("s_waitcnt vmcnt(9)")
for p in range(2):
    for hh in range(2):
        a(f"ds_read_b64_tr_b16 {vr(UG+4*p+2*hh,2)}, v{aU1 if p else aU0} offset:{UT0+512*hh}")
for p in range(2):
    a(f"s_waitcnt lgkmcnt({2-2*p})\nbuffer_store_dwordx4 {vr(UG+4*p,4)}, v{aUo}, {SRD}, s46 offen offset:{1024*p} sc1")
a.free(aU0); a.free(aU1)
stamp()
aEw, aEr = a.v(), a.v()
a(f"""
s_mul_i32 s38, {WV}, 4608
s_add_u32 s38, s38, {EB}
v_lshl_add_u32 v{aEw}, v{vL}, 2, s38
v_mul_u32_u24 v{aEr}, 288, v{vC}
v_lshl_add_u32 v{aEr}, v{vG}, 4, v{aEr}
v_add_u32 v{aEr}, s38, v{aEr}
s_waitcnt vmcnt(2)
""")
for i in range(7):
    a(f"v_lshlrev_b32 v{PR+i}, 16, v{PR+i}")
dt = PR + 6
LOG2E = 1.4426950408889634
import struct
hi = struct.unpack("<f", struct.pack("<f", LOG2E))[0]
a(f"""
s_mov_b32 s38, {f2u(LOG2E)}
v_mul_f32 v{t}, s38, v{dt}
v_fma_f32 v{t2}, v{dt}, s38, -v{t}
v_fmamk_f32 v{t2}, v{dt}, {f2u(LOG2E-hi)}, v{t2}
v_exp_f32 v{t}, v{t}
v_mul_f32 v{t2}, {f2u(0.6931471805599453)}, v{t2}
v_fma_f32 v{t}, v{t}, v{t2}, v{t}
v_cvt_pk_bf16_f32 v{dt}, v{t}, v{t}
v_and_b32 v{dt}, 0xffff0000, v{dt}
v_mul_f32 v{PR}, v{dt}, v{PR}
v_mul_f32 v{PR+1}, v{dt}, v{PR+1}
v_mul_f32 v{PR+2}, v{dt}, v{PR+2}
v_mul_f32 v{PR+3}, v{dt}, v{PR+3}
v_mul_f32 v{PR}, s38, v{PR}
v_mul_f32 v{PR+1}, 0.15915494, v{PR+1}
""")
EE = a.v(6)
SS = a.v(16)
cmul(SS, SS + 1, PR + 4, PR + 5, PR + 2, PR + 3, False)
for i, l in enumerate((1.0, 8.0, 128.0)):
    a(f"v_mul_f32 v{t}, {f2u(l)}, v{PR}\nv_mul_f32 v{t2}, {f2u(l)}, v{PR+1}\nv_exp_f32 v{t}, v{t}\nv_fract_f32 v{t2}, v{t2}")
    a(f"v_cos_f32 v{EE+2*i}, v{t2}\nv_sin_f32 v{EE+2*i+1}, v{t2}\nv_mul_f32 v{EE+2*i}, v{t}, v{EE+2*i}\nv_mul_f32 v{EE+2*i+1}, v{t}, v{EE+2*i+1}")
pk = a.v(2); pa, pb = a.v(2), a.v(2)
a(f"v_mov_b32 v{pk}, 0x3f80\nds_write_b32 v{aEw}, v{pk}")
cvt(pk + 1, EE + 2, EE + 3, False, True)
a(f"ds_write_b32 v{aEw}, v{pk+1} offset:288")
cur = EE + 2
for c in range(2, 16):
    nxt = pa if c % 2 == 0 else pb
    cmul(nxt, nxt + 1, cur, cur + 1, EE + 2, EE + 3, False)
    cvt(pk + c % 2, nxt, nxt + 1, False, True)
    a(f"ds_write_b32 v{aEw}, v{pk+c%2} offset:{288*c}")
    cur = nxt
BF, AF = a.v(16), a.v(16)
for k in range(4):
    a(f"ds_read_b128 {vr(BF+4*k,4)}, v{aEr} offset:{64*k}")
KD = a.v(12)
nrow = [0]


def put_row(src):
    cvt(pk + nrow[0] % 2, src, src + 1)
    a(f"ds_write_b32 v{aEw}, v{pk+nrow[0]%2} offset:{288*(nrow[0]%16)}")
    nrow[0] += 1


def advance(i):
    s = SS + 2 * i
    cmul(pa, pa + 1, s, s + 1, EE + 4, EE + 5, False)
    a(f"v_mov_b32 v{s}, v{pa}\nv_mov_b32 v{s+1}, v{pa+1}")
    put_row(pa)


def read_tile():
    for k in range(4):
        a(f"ds_read_b128 {vr(AF+4*k,4)}, v{aEr} offset:{64*k}")


def mma_tile(T, pending):
    a(f"s_waitcnt lgkmcnt({pending})")
    for k in range(4):
        mfma32(KD + 4 * T, AF + 4 * k, BF + 4 * k, KD + 4 * T if k else None)


put_row(SS)
for i in range(1, 8):
    cmul(SS + 2 * i, SS + 2 * i + 1, SS + 2 * i - 2, SS + 2 * i - 1, EE, EE + 1, False)
    put_row(SS + 2 * i)
for i in range(8):
    advance(i)
read_tile()
for q in range(2):
    for i in (0, 2, 4, 6):
        advance(i)
mma_tile(0, 8)
a("s_waitcnt vmcnt(0)")
stamp()
a("s_barrier")
for q in range(4):
    for i in (0, 4):
        advance(i)
read_tile()
for q in range(5):
    advance(0)
mma_tile(1, 5)
for q in range(4):
    advance(0)
read_tile()
aK = a.v(4)
a(f"""
s_mul_i32 s38, s44, {KCS}
s_add_u32 s38, s38, {KC}
v_lshlrev_b32 v{t}, 7, v{vGh}
v_lshl_add_u32 v{t}, v{vG1}, 2, v{t}
v_lshl_add_u32 v{t}, v{vC}, 3, v{t}
v_lshl_add_u32 v{aK}, v{t}, 2, s38
v_lshlrev_b32 v{t}, 6, v{vG}
v_sub_u32 v{t2}, 2, v{vGh}
v_lshlrev_b32 v{t2}, v{t2}, v{vC}
v_add3_u32 v{t}, v{t}, v{t2}, 256
v_lshl_add_u32 v{aK+1}, v{t}, 2, s38
v_mul_u32_u24 v{t}, 120, v{vGh}
v_add3_u32 v{aK+2}, v{aK+1}, v{t}, 8
v_lshl_add_u32 v{t}, v{vG}, 6, v{vC}
v_lshl_add_u32 v{aK+3}, v{t}, 2, s38
""".replace("v_add3_u32 v%d, v%d, v%d, 256" % (t, t, t2), "v_add_u32 v%d, v%d, v%d\nv_add_u32 v%d, 256, v%d" % (t, t, t2, t, t)))
for r in range(4):
    a(f"ds_add_f32 v{aK}, v{KD+r} offset:{4*r}")
for r in range(4):
    a(f"ds_add_f32 v{aK+1+(r>>1)}, v{KD+4+r} offset:{4*(r&1)}")
mma_tile(2, 8)
for r in range(4):
    a(f"ds_add_f32 v{aK+3}, v{KD+8+r} offset:{2048+64*r}")
a("s_waitcnt lgkmcnt(0)\ns_barrier")
stamp()
for r_, n_ in ((PR, 7), (EE, 6), (SS, 16), (pk, 2), (pa, 2), (pb, 2), (BF, 16), (AF, 16), (KD, 12), (aK, 4), (aEw, 1), (aEr, 1)):
    a.free(r_, n_)
KV = a.v(18); RW = a.v(8); aR = a.v()
for dd in range(2):
    for e in range(9):
        a(f"ds_read_b32 v{KV+9*dd+e}, v{EX+e} offset:{KC+KCS*dd}")
a(f"v_lshrrev_b32 v{t}, 8, v0\nv_mul_u32_u24 v{aR}, 16640, v{t}\nv_and_b32 v{t}, 255, v0\nv_lshl_add_u32 v{aR}, v{t}, 4, v{aR}")
a(f"v_lshrrev_b32 v{t}, 6, v0\nv_mul_u32_u24 v{t}, 4160, v{t}\nv_and_b32 v{t2}, 7, v0\nv_lshl_add_u32 v{t}, v{t2}, 2, v{t}\nv_mov_b32 v{t2}, 0")
for dd in range(2):
    a(f"s_waitcnt lgkmcnt({9 if dd == 0 else 2})")
    for i in range(4):
        cvt(RW + i, KV + 9 * dd + 2 * i, KV + 9 * dd + 2 * i + 1)
        cvt(RW + 4 + i, KV + 9 * dd + 2 * i + 1, KV + 9 * dd + 2 * i + 2)
    a(f"ds_write_b128 v{aR}, {vr(RW,4)} offset:{RT+8320*dd}\nds_write_b128 v{aR}, {vr(RW+4,4)} offset:{RT+8320*dd+4160}")
a(f"ds_write_b32 v{t}, v{t2} offset:{RT+4096}")
a.free(KV, 18); a.free(RW, 8); a.free(aR); a.free(EX, 9)
SK = a.v(16)
for p in range(2):
    a(f"v_lshlrev_b32 v{DSK+p}, 16, v{DSK+p}")
    for i in range(4):
        s = SK + 8 * p + 2 * i
        a(f"v_lshlrev_b32 v{s}, 16, v{UG+4*p+i}\nv_and_b32 v{s+1}, 0xffff0000, v{UG+4*p+i}\nv_mul_f32 v{s}, v{DSK+p}, v{s}\nv_mul_f32 v{s+1}, v{DSK+p}, v{s+1}")
        cvt(s + 1, s, s + 1)
        a(f"v_lshlrev_b32 v{s}, 16, v{s+1}\nv_and_b32 v{s+1}, 0xffff0000, v{s+1}")
old0, old1 = a.v(), a.v()
a(f"v_mov_b32 v{old0}, v{UG}\nv_mov_b32 v{old1}, v{UG+4}")
a.free(UG, 8); a.free(DSK, 2)
aG, aUTw, aYr, aYw, aUf = [a.v() for _ in range(5)]
aT = a.v(4)
a(f"""
v_lshrrev_b32 v{t}, 3, v0
v_and_b32 v{t2}, 7, v0
v_lshlrev_b32 v{aG}, 14, v{t}
v_lshl_add_u32 v{aG}, v{t2}, 4, v{aG}
v_and_b32 v{aYr}, 7, v{t}
v_xor_b32 v{aYr}, v{aYr}, v{t2}
v_lshlrev_b32 v{aYr}, 4, v{aYr}
v_lshl_add_u32 v{aYr}, v{t}, 7, v{aYr}
v_lshlrev_b32 v{aUTw}, 5, v{t}
v_and_b32 v{t}, 3, v0
v_mul_u32_u24 v{t}, {UTS}, v{t}
v_lshrrev_b32 v{t2}, 2, v{t2}
v_lshl_add_u32 v{t}, v{t2}, 4, v{t}
v_add_u32 v{aUTw}, v{aUTw}, v{t}
s_lshl_b32 s60, {IDX}, 7
s_add_u32 s60, s60, {WS_U}
s_add_u32 s61, s60, 0x100000
v_lshl_add_u32 v{t}, v{vGh}, 2, {WV}
v_and_b32 v{t2}, 7, v{vC}
v_xor_b32 v{t}, v{t}, v{t2}
v_lshlrev_b32 v{aYw}, 4, v{t}
v_lshl_add_u32 v{aYw}, v{vG1}, 3, v{aYw}
v_lshl_add_u32 v{aYw}, v{vC}, 7, v{aYw}
s_mul_i32 s38, {WV}, {UTS}
s_add_u32 s38, s38, {UT+480}
v_lshlrev_b32 v{aUf}, 5, v{vC}
v_lshl_add_u32 v{aUf}, v{vG}, 4, v{aUf}
v_add_u32 v{aUf}, s38, v{aUf}
s_mul_i32 s38, {WV}, 8320
s_add_u32 s38, s38, {RT+4160-512}
v_sub_u32 v{t}, 2031, v{vC}
v_lshrrev_b32 v{t2}, 1, v{t}
v_lshl_add_u32 v{t2}, v{vG}, 2, v{t2}
v_lshl_add_u32 v{t2}, v{t2}, 2, s38
v_and_b32 v{t}, 1, v{vC}
v_mul_u32_u24 v{t}, 4160, v{t}
v_sub_u32 v{aT}, v{t2}, v{t}
v_add_u32 v{aT+1}, -1024, v{aT}
v_add_u32 v{aT+2}, -2048, v{aT}
v_add_u32 v{aT+3}, -3072, v{aT}
s_waitcnt lgkmcnt(0)
""")
stamp()
a("s_barrier")
stamp()
GI = a.v(8)
a(f"buffer_load_dwordx4 {vr(GI,4)}, v{aG}, {SRD}, s60 offen sc1\nbuffer_load_dwordx4 {vr(GI+4,4)}, v{aG}, {SRD}, s61 offen sc1")
TF, UF, AC = a.v(32), a.v(32), a.v(32)


def read_T(mu):
    o_ = 0 if mu & 1 else 128
    a(f"ds_read2_b32 {vr(TF+4*mu,2)}, v{aT+(mu>>1)} offset0:{o_} offset1:{o_+1}")
    a(f"ds_read2_b32 {vr(TF+4*mu+2,2)}, v{aT+(mu>>1)} offset0:{o_+2} offset1:{o_+3}")


def read_U(nu):
    a(f"ds_read_b128 {vr(UF+4*nu,4)}, v{aUf} offset:{512*nu}")


Lnc = a.label("noconv0")
a(f"s_cmp_ge_u32 {WV}, 4\ns_cbranch_scc1 {Lnc}")
for mu in range(7, 0, -1):
    read_T(mu)
for i in range(32):
    a(f"v_mov_b32 v{AC+i}, 0")
for k in range(1, 4):
    a(f"v_add_u32 v{aT+k}, -64, v{aT+k}")
a(f"{Lnc}:")
a(f"s_waitcnt vmcnt(1)\nds_write_b128 v{aUTw}, {vr(GI,4)} offset:{UT+512}")
a(f"s_waitcnt vmcnt(0)\nds_write_b128 v{aUTw}, {vr(GI+4,4)} offset:{UT+512+2048}")
nold0, nold1 = a.v(), a.v()
a(f"v_not_b32 v{nold0}, v{GI}\nv_not_b32 v{nold1}, v{GI+4}")
a("s_waitcnt lgkmcnt(0)\ns_barrier")
stamp()
Lnc = a.label("noconv1"); Lloop = a.label("rho")
a(f"s_cmp_ge_u32 {WV}, 4\ns_cbranch_scc1 {Lnc}")
for nu in range(8):
    read_U(nu)
read_T(0)
a(f"v_add_u32 v{aT}, -64, v{aT}\nv_add_u32 v{aUf}, -64, v{aUf}\ns_mov_b32 s38, 0")
a(f".p2align 6\n{Lloop}:")
queue = [("U", n) for n in range(8)] + [("T", 0), ("T", 0)]
for mu in range(7, -1, -1):
    for J in range(mu, 8):
        nu = J - mu
        last = max([i for i, x in enumerate(queue) if x in (("U", nu), ("T", mu))], default=-1)
        if last >= 0:
            a(f"s_waitcnt lgkmcnt({len(queue)-1-last})")
            queue = queue[last + 1:]
        mfma32(AC + 4 * J, TF + 4 * mu, UF + 4 * nu, AC + 4 * J)
        if mu == 0:
            read_U(nu); queue.append(("Un", nu))
    if mu == 4:
        a("s_waitcnt lgkmcnt(6)")
        queue = queue[-6:]
    read_T(mu); queue += [("Tn", mu), ("Tn", mu)]
    if mu & 1 == 0:
        a(f"v_add_u32 v{aT+(mu>>1)}, -64, v{aT+(mu>>1)}")
    if mu == 1:
        a("s_waitcnt lgkmcnt(4)")
        queue = queue[-4:]
    assert len(queue) <= 15
a(f"v_add_u32 v{aUf}, -64, v{aUf}\ns_add_u32 s38, s38, 1\ns_cmp_lt_u32 s38, 8\ns_cbranch_scc1 {Lloop}")
a("s_waitcnt lgkmcnt(0)")
for J in range(8):
    cvt(TF + 2 * J, AC + 4 * J, AC + 4 * J + 1)
    cvt(TF + 2 * J + 1, AC + 4 * J + 2, AC + 4 * J + 3)
    a(f"ds_write_b64 v{aYw}, {vr(TF+2*J,2)} offset:{YS+2048*J}")
a(f"{Lnc}:\ns_waitcnt lgkmcnt(0)")
stamp()
a("s_barrier")
a(f"ds_read_b128 {vr(GI,4)}, v{aYr} offset:{YS}\nds_read_b128 {vr(GI+4,4)}, v{aYr} offset:{YS+8192}")
a(f"s_waitcnt lgkmcnt(1)\nv_bfi_b32 v{GI}, 1, v{nold0}, v{GI}\nbuffer_store_dwordx4 {vr(GI,4)}, v{aG}, {SRD}, s60 offen sc1")
a(f"s_waitcnt lgkmcnt(0)\nv_bfi_b32 v{GI+4}, 1, v{nold1}, v{GI+4}\nbuffer_store_dwordx4 {vr(GI+4,4)}, v{aG}, {SRD}, s61 offen sc1")
stamp()
aOw, aOr, aO = a.v(), a.v(), a.v()
a(f"""
s_mul_i32 s38, {WV}, 3072
v_lshl_add_u32 v{t}, v{vGh}, 4, v{vC}
v_mul_u32_u24 v{aOw}, 48, v{t}
v_lshl_add_u32 v{aOw}, v{vG1}, 4, v{aOw}
v_add_u32 v{aOw}, s38, v{aOw}
v_lshl_add_u32 v{t}, v{vG}, 3, v{vR}
v_mul_u32_u24 v{aOr}, 48, v{t}
v_lshl_add_u32 v{aOr}, v{vCq}, 3, v{aOr}
v_add_u32 v{aOr}, s38, v{aOr}
s_lshl_b32 s38, {IDX}, 15
s_lshl_b32 s39, {WV}, 7
s_add_u32 s38, s38, s39
v_lshlrev_b32 v{aO}, 11, v{vC}
v_lshl_add_u32 v{aO}, v{vG}, 4, v{aO}
v_add_u32 v{aO}, s38, v{aO}
s_waitcnt vmcnt(0)
""")
if opt["pslp"]:
    a(f"s_sleep {opt['pslp']}")
stamp()
GY = UF
poll_toggle(GY, GY + 4, aUo, "s46", "s46", old0, old1, imm1=1024)
stamp()
for p in range(2):
    for i in range(4):
        y = GY + 4 * p + i; s = SK + 8 * p + 2 * i
        a(f"v_lshlrev_b32 v{t}, 16, v{y}\nv_and_b32 v{t2}, 0xffff0000, v{y}\nv_add_f32 v{t}, v{t}, v{s}\nv_add_f32 v{t2}, v{t2}, v{s+1}")
        cvt(y, t, t2)
    a(f"ds_write_b128 v{aOw}, {vr(GY+4*p,4)} offset:{OT+1536*p}")
for p in range(2):
    for hh in range(2):
        a(f"ds_read_b64_tr_b16 {vr(GI+4*p+2*hh,2)}, v{aOr} offset:{OT+1536*p+192*hh}")
for p in range(2):
    a(f"s_waitcnt lgkmcnt({2-2*p})\nglobal_store_dwordx4 v{aO}, {vr(GI+4*p,4)}, {S_OUT} offset:{64*p} sc1")
stamp()
if STAMP:
    a("s_waitcnt vmcnt(0)")
stamp()
a("s_branch L_fin")
a(f"{LH}:")
nstamp[0] = common_stamp
helper_start(WS_EA, vEp, vL, "L_conv", "L_codeend")
a(f"s_barrier\ns_waitcnt vmcnt(0)\nv_add_u32 v{vEp}, 1, v{vEp}\ns_barrier")
stamp()
helper_flags(WS_FLA, WS_EA, vEp)
a("s_barrier")
stamp()
helper_poll(WS_FLA, WS_EA, vEp, vL)
stamp()
a("s_barrier\ns_barrier\ns_barrier")
a("L_fin:")
dump_stamps()
a("L_end:\ns_endpgm\nL_codeend:")

body = a.finish()
nv = max(a.vmax, vmax_spec)
nv = (nv + 7) // 8 * 8
hdr = open("concat_heads__ssm_conv_s4__spectral_gfnet__prompt.s.ref").read().split("\n")
out = [l for l in hdr if l.startswith(";") and "@launch" not in l and "Override" not in l and "grid=ceil" not in l]
out.append(f"; @launch grid=(256,1,1) block=(576,1,1) lds={LDS_BYTES}")
out.append('.amdgcn_target "amdgcn-amd-amdhsa--gfx950"\n.text')
out.append(f".globl {KN}\n.p2align 8\n.type {KN},@function\n{KN}:")
out += [("    " + l if not (l.endswith(":") or l.startswith(".")) else l) for l in body]
out.append('.section .rodata,"a"\n.p2align 6')
out.append(f""".amdhsa_kernel {KN}
  .amdhsa_next_free_vgpr {nv}
  .amdhsa_next_free_sgpr 102
  .amdhsa_accum_offset {nv}
  .amdhsa_group_segment_fixed_size 0
  .amdhsa_kernarg_size 120
  .amdhsa_user_sgpr_count 2
  .amdhsa_user_sgpr_kernarg_segment_ptr 1
  .amdhsa_system_sgpr_workgroup_id_x 1
.end_amdhsa_kernel""")
print("\n".join(out))
print(f"vgprs spec {vmax_spec} conv {a.vmax} -> {nv}; nops added {a.added}; lines {len(body)}", file=sys.stderr)
```

```python
import sys
sys.path.insert(0, "work")
from asmlib import Asm, vr, f2u

opt = dict(stamp=0, nt=1, fslp=8, pslp=2, prefetch=1, maxpoll=400000)
for arg in sys.argv[1:]:
    k, v = arg.split("=")
    opt[k] = int(v)
STAMP = opt["stamp"]
NT = " nt" if opt["nt"] else ""
KN = "concat_heads__ssm_conv_s4__spectral_gfnet__prompt_kernel"

WS_X1, WS_U = 0x000000, 0x200000
WS_FLB, WS_FLA = 0x400000, 0x404000
WS_EB, WS_EA = 0x408000, 0x408080
WS_STAMP = 0x600000
WS_SIZE = 0x800000
OOB = 0x40000000
XT, T1, S1 = 0, 16384, 1072
XS, WSL, ZT, T2, S2, ZS = 0, 18944, 0, 23040, 1216, 43712
UT0, YS, UT, UTS, KC, KCS, EB, RT, OT = 0, 0, 16384, 4640, 34944, 3088, 51328, 51328, 51328
LDS_BYTES = 88192

S_U, S_ARE, S_AIM, S_BRE, S_BIM, S_CRE, S_CIM, S_LDT = [f"s[{4+2*i}:{5+2*i}]" for i in range(8)]
S_DSK, S_X, S_WR, S_WI, S_OUT = "s[20:21]", "s[22:23]", "s[24:25]", "s[26:27]", "s[28:29]"
SRD = "s[32:35]"
IDX, WV = "s36", "s37"

a = Asm()
nstamp = [0]


def stamp():
    if STAMP:
        i = nstamp[0]
        nstamp[0] += 1
        assert i < 16
        a(f"s_memrealtime s[{64+2*i}:{65+2*i}]\ns_waitcnt lgkmcnt(0)")


def dump_stamps():
    if STAMP:
        v0_, v1_ = a.v(), a.v()
        a(f"s_mov_b64 exec, 1\ns_lshl_b32 s38, s2, 4\ns_add_u32 s38, s38, {WV}\ns_lshl_b32 s38, s38, 6\ns_add_u32 s38, s38, {WS_STAMP}\nv_mov_b32 v{v0_}, s38")
        for i in range(16):
            a(f"v_mov_b32 v{v1_}, s{64+2*i}\nbuffer_store_dword v{v1_}, v{v0_}, {SRD}, 0 offen offset:{4*i}")
        a.free(v0_); a.free(v1_)


def mfma32(d, A, B, c):
    a(f"v_mfma_f32_16x16x32_bf16 {vr(d,4)}, {vr(A,4)}, {vr(B,4)}, {vr(c,4) if c is not None else 0}")


def mfma16(d, A, B):
    a(f"v_mfma_f32_16x16x16_bf16 {vr(d,4)}, {vr(A,2)}, {vr(B,2)}, 0")


def cvt(d, x, y, nx=False, ny=False):
    a(f"v_cvt_pk_bf16_f32 v{d}, {'-' if nx else ''}v{x}, {'-' if ny else ''}v{y}")


def cmul(dr, di, x, y, c, s, conj):
    a(f"v_mul_f32 v{dr}, v{x}, v{c}\nv_mul_f32 v{di}, v{y}, v{c}")
    if conj:
        a(f"v_fmac_f32 v{dr}, v{y}, v{s}\nv_fma_f32 v{di}, -v{x}, v{s}, v{di}")
    else:
        a(f"v_fma_f32 v{dr}, -v{y}, v{s}, v{dr}\nv_fmac_f32 v{di}, v{x}, v{s}")


def sincos_chain(n, a0, step, cos_dst, sin_dst):
    for i in range(n):
        a(f"v_cos_f32 v{cos_dst+i}, v{a0}\nv_sin_f32 v{sin_dst+i}, v{a0}")
        if i < n - 1:
            a(f"v_add_f32 v{a0}, v{a0}, v{step}")


def poll_toggle(g0, g1, vaddr, off0, off1, old0, old1, imm1=None):
    L, Le = a.label("poll"), a.label("polled")
    t0, t1 = a.v(), a.v()
    a(f"s_mov_b32 s38, 0\n{L}:")
    a(f"buffer_load_dwordx4 {vr(g0,4)}, v{vaddr}, {SRD}, {off0} offen sc1")
    a(f"buffer_load_dwordx4 {vr(g1,4)}, v{vaddr}, {SRD}, {off1} offen{'' if imm1 is None else f' offset:{imm1}'} sc1")
    a(f"s_add_u32 s38, s38, 1\ns_waitcnt vmcnt(0)")
    a(f"v_xor_b32 v{t0}, v{g0}, v{old0}\nv_xor_b32 v{t1}, v{g1}, v{old1}\nv_and_b32 v{t0}, v{t0}, v{t1}\nv_and_b32 v{t0}, 1, v{t0}")
    a(f"v_cmp_eq_u32 vcc, 0, v{t0}\ns_cbranch_vccz {Le}\ns_mov_b64 exec, vcc")
    a(f"s_cmp_lt_u32 s38, {opt['maxpoll']}\ns_cbranch_scc1 {L}\n{Le}:\ns_mov_b64 exec, -1")
    a.free(t0); a.free(t1)


def helper_flags(fl, ep, vep):
    t = a.v()
    a(f"s_lshl_b32 s38, {IDX}, 7\ns_add_u32 s38, s38, {fl}\nv_mov_b32 v{t}, s38\ns_mov_b64 exec, 1")
    a(f"buffer_store_dword v{vep}, v{t}, {SRD}, 0 offen sc1\ns_mov_b64 exec, -1")
    a.free(t)


def helper_poll(fl, ep, vep, vL):
    L, Le, Ls = a.label("fpoll"), a.label("fpolled"), a.label("noepoch")
    t, f0, f1 = a.v(), a.v(), a.v()
    a(f"v_lshlrev_b32 v{t}, 7, v{vL}\ns_mov_b32 s39, {fl}\ns_mov_b32 s40, {fl+8192}\ns_mov_b32 s38, 0")
    if opt["fslp"]:
        a(f"s_sleep {opt['fslp']}")
    a(f"{L}:\nbuffer_load_dword v{f0}, v{t}, {SRD}, s39 offen sc1\nbuffer_load_dword v{f1}, v{t}, {SRD}, s40 offen sc1")
    a(f"s_add_u32 s38, s38, 1\ns_waitcnt vmcnt(0)\nv_xor_b32 v{f0}, v{f0}, v{vep}\nv_xor_b32 v{f1}, v{f1}, v{vep}\nv_or_b32 v{f0}, v{f0}, v{f1}")
    a(f"v_cmp_ne_u32 vcc, 0, v{f0}\ns_cbranch_vccz {Le}\ns_mov_b64 exec, vcc")
    a(f"s_cmp_lt_u32 s38, {opt['maxpoll']}\ns_cbranch_scc1 {L}\n{Le}:\ns_mov_b64 exec, 1")
    a(f"s_cmp_lg_u32 {IDX}, 0\ns_cbranch_scc1 {Ls}\nv_mov_b32 v{t}, {ep}\nbuffer_store_dword v{vep}, v{t}, {SRD}, 0 offen sc1\n{Ls}:\ns_mov_b64 exec, -1")
    a.free(t); a.free(f0); a.free(f1)


def helper_start(ep, vep, vL, first, last):
    t, j = a.v(), vep + 1
    a(f"v_mov_b32 v{t}, {ep}\nbuffer_load_dword v{vep}, v{t}, {SRD}, 0 offen sc1")
    if opt["prefetch"]:
        Lp = a.label("pc")
        a(f"s_getpc_b64 s[40:41]\n{Lp}:\ns_sub_u32 s40, s40, {Lp}-{first}\ns_subb_u32 s41, s41, 0\ns_mov_b32 s42, {last}-{first}\ns_mov_b32 s43, 0x20000")
        a(f"v_lshlrev_b32 v{t}, 7, v{vL}\ns_mov_b32 s38, 8192")
        a(f"buffer_load_dword v{j}, v{t}, s[40:43], 0 offen\nbuffer_load_dword v{j}, v{t}, s[40:43], s38 offen")
    a.free(t)


vL, vC, vG = a.v(), a.v(), a.v()
vt0, vt1 = a.v(), a.v()
a(f"""
s_load_dwordx16 s[4:19], s[0:1], 0
s_load_dwordx8 s[20:27], s[0:1], 64
s_load_dwordx4 s[28:31], s[0:1], 96
s_load_dwordx2 s[32:33], s[0:1], 112
s_cmp_ge_u32 s2, 256
s_cbranch_scc1 L_end
v_lshrrev_b32 v{vt0}, 6, v0
v_and_b32 v{vL}, 63, v0
s_and_b32 s38, s2, 7
v_readfirstlane_b32 {WV}, v{vt0}
s_bfe_u32 {IDX}, s2, 0x40003
s_lshl_b32 s38, s38, 4
s_add_u32 {IDX}, {IDX}, s38
s_lshl_b32 s39, {IDX}, 14
s_lshl_b32 s40, {IDX}, 10
s_cmp_ge_u32 s2, 128
s_cselect_b32 s39, s39, s40
s_cselect_b32 s40, 1, 0x80
s_lshl_b32 s40, s40, 10
s_lshl_b32 s38, {WV}, 7
s_add_u32 s39, s39, s38
s_lshl_b32 s41, {WV}, 11
s_mov_b32 m0, s41
v_lshrrev_b32 v{vt0}, 2, v{vL}
v_and_b32 v{vt0}, 4, v{vt0}
v_and_b32 v{vt1}, 7, v{vL}
v_xor_b32 v{vt0}, v{vt0}, v{vt1}
v_lshl_add_u32 v{vt0}, v{vt0}, 4, s39
v_lshrrev_b32 v{vt1}, 3, v{vL}
v_mad_u32_u24 v{vt0}, v{vt1}, s40, v{vt0}
s_lshl_b32 s40, s40, 3
s_sub_u32 s40, s40, 1024
v_xor_b32 v{vt1}, 32, v{vt0}
v_add_u32 v{vt1}, s40, v{vt1}
s_mov_b32 s34, {WS_SIZE}
s_mov_b32 s35, 0x20000
v_and_b32 v{vC}, 15, v{vL}
v_lshrrev_b32 v{vG}, 4, v{vL}
s_cmp_ge_u32 s2, 128
s_waitcnt lgkmcnt(0)
s_cselect_b64 s[42:43], {S_U}, {S_X}
s_cmp_eq_u32 {WV}, 8
s_cbranch_scc1 L_noload
global_load_lds_dwordx4 v{vt0}, s[42:43]{NT}
global_load_lds_dwordx4 v{vt1}, s[42:43] offset:1024{NT}
L_noload:
""")
stamp()
a("s_cmp_ge_u32 s2, 128\ns_cbranch_scc1 L_conv")
a.free(vt0); a.free(vt1)
common_free = set(a.vfree)
common_stamp = nstamp[0]

a("L_spec:")
vEp = a.v(2)
Lh = a.label("bh0")
a(f"s_cmp_lg_u32 {WV}, 8\ns_cbranch_scc1 {Lh}")
helper_start(WS_EB, vEp, vL, "L_spec", "L_conv")
z = a.v(4, 2); t = a.v()
a(f"v_mov_b32 v{z}, 0\nv_mov_b32 v{z+1}, 0\nv_mov_b32 v{z+2}, 0\nv_mov_b32 v{z+3}, 0\nv_lshlrev_b32 v{t}, 4, v{vL}")
a(f"ds_write_b128 v{t}, {vr(z,4)} offset:{T1+16*S1}\nds_write_b128 v{t}, {vr(z,4)} offset:{T1+16*S1+48}")
a.free(z, 4); a.free(t)
a(f"{Lh}:")
a(f"""
s_lshl_b32 s44, {WV}, 1
s_add_u32 s45, s44, 1
s_lshl_b32 s46, {WV}, 11
s_and_b32 s38, {WV}, 7
s_lshr_b32 s39, {WV}, 3
s_lshl_b32 s40, s39, 10
s_cmp_eq_u32 s38, 0
s_cselect_b32 s44, s39, s44
s_cselect_b32 s45, 16, s45
s_cselect_b32 s46, s40, s46
s_cselect_b32 s48, 1, 0
s_cselect_b32 s47, {OOB>>10}, 1
s_lshl_b32 s47, s47, 10
s_mov_b32 s49, 0
s_mov_b32 s50, s48
s_lshl_b32 s38, {IDX}, 14
s_add_u32 s46, s46, s38
s_add_u32 s47, s47, s46
""")
vR, vCq = a.v(), a.v()
fC, fG = a.v(), a.v()
a(f"v_bfe_u32 v{vR}, v{vL}, 2, 2\nv_and_b32 v{vCq}, 3, v{vL}\nv_cvt_f32_u32 v{fC}, v{vC}\nv_cvt_f32_u32 v{fG}, v{vG}")
vG1, vGh = a.v(), a.v()
a(f"v_and_b32 v{vG1}, 1, v{vG}\nv_lshrrev_b32 v{vGh}, 1, v{vG}")
fG1x8, fGhq = a.v(), a.v()
a(f"v_cvt_f32_u32 v{fG1x8}, v{vG1}\nv_cvt_f32_u32 v{fGhq}, v{vGh}\nv_mul_f32 v{fG1x8}, 0x41000000, v{fG1x8}\nv_mul_f32 v{fGhq}, 0x3e800000, v{fGhq}")

tc = a.v(16); ts = tc + 8
ang, stp = a.v(), a.v()
F1 = a.v(2)
a(f"""
v_lshrrev_b32 v{ang}, 1, v{vC}
v_and_b32 v{stp}, 1, v{vC}
v_cmp_eq_u32 vcc, 1, v{vC}
v_cvt_f32_u32 v{tc}, v{stp}
v_cndmask_b32 v{ang}, v{ang}, 8, vcc
v_mul_f32 v{tc}, 0x3e800000, v{tc}
v_cvt_f32_u32 v{stp}, v{ang}
v_cndmask_b32 v{tc}, v{tc}, 0, vcc
v_mul_f32 v{stp}, 0x3d800000, v{stp}
v_mul_f32 v{ang}, v{fG}, v{stp}
v_fma_f32 v{ang}, v{ang}, 4.0, v{tc}
""")
for i in range(4):
    a(f"v_cos_f32 v{tc+i}, v{ang}")
    if i < 3:
        a(f"v_add_f32 v{ang}, v{ang}, v{stp}")
cvt(F1, tc, tc + 1); cvt(F1 + 1, tc + 2, tc + 3)
B2re, B2im = a.v(4), a.v(4)
a(f"v_mul_f32 v{stp}, 0x3d800000, v{fC}\nv_fma_f32 v{ang}, v{fG1x8}, v{stp}, -v{fGhq}")
sincos_chain(8, ang, stp, tc, ts)
for i in range(4):
    cvt(B2re + i, tc + 2 * i, tc + 2 * i + 1)
    cvt(B2im + i, ts + 2 * i, ts + 2 * i + 1, True, True)
TW1c, TW1s = a.v(8), a.v(8)
ang2 = a.v()
a(f"v_mul_f32 v{stp}, 0x3b000000, v{fC}\nv_mul_f32 v{ang}, v{fG}, v{stp}\nv_mul_f32 v{ang}, 4.0, v{ang}\nv_fmamk_f32 v{ang2}, v{stp}, 0x41800000, v{ang}")
sincos_chain(4, ang, stp, TW1c, TW1s)
sincos_chain(4, ang2, stp, TW1c + 4, TW1s + 4)
COS = [a.v(4), a.v(4)]; SIN = [a.v(4), a.v(4)]; NSIN = [a.v(4), a.v(4)]
a(f"v_mul_f32 v{stp}, 0x3d000000, v{fC}\nv_mul_f32 v{ang}, v{fG}, v{stp}\nv_mul_f32 v{ang}, 4.0, v{ang}\nv_fmamk_f32 v{ang2}, v{stp}, 0x41800000, v{ang}")
sincos_chain(4, ang, stp, tc, ts)
sincos_chain(4, ang2, stp, tc + 4, ts + 4)
for i in range(4):
    cvt(COS[0] + i, tc + 2 * i, tc + 2 * i + 1)
    cvt(SIN[0] + i, ts + 2 * i, ts + 2 * i + 1)
    cvt(NSIN[0] + i, ts + 2 * i, ts + 2 * i + 1, True, True)
    cvt(COS[1] + i, tc + 2 * i, tc + 2 * i + 1, False, True)
    cvt(SIN[1] + i, ts + 2 * i, ts + 2 * i + 1, False, True)
    cvt(NSIN[1] + i, ts + 2 * i, ts + 2 * i + 1, True, False)

aX0, aX1, aT1w, aT1r, aOut = a.v(), a.v(), a.v(), a.v(), a.v()
t = a.v()
a(f"""
v_lshl_add_u32 v{t}, v{vG}, 2, v{vR}
v_lshlrev_b32 v{aX0}, 1, v{vR}
v_and_b32 v{aX0}, 4, v{aX0}
v_lshl_add_u32 v{aX0}, v{vGh}, 1, v{aX0}
v_xor_b32 v{aX0}, v{aX0}, v{vCq}
v_lshlrev_b32 v{aX0}, 4, v{aX0}
v_lshl_add_u32 v{aX0}, v{t}, 7, v{aX0}
v_add_u32 v{aX0}, s41, v{aX0}
v_xor_b32 v{aX1}, 64, v{aX0}
s_lshl_b32 s38, {WV}, 7
s_lshr_b32 s39, {WV}, 2
s_lshl_b32 s39, s39, 5
s_add_u32 s38, s38, s39
v_mul_u32_u24 v{aT1w}, {S1}, v{vC}
v_lshl_add_u32 v{aT1w}, v{vG}, 4, v{aT1w}
v_add_u32 v{aT1w}, s38, v{aT1w}
s_mul_i32 s38, s44, {S1}
s_mul_i32 s39, s45, {S1}
s_sub_u32 s39, s39, s38
v_mul_u32_u24 v{aT1r}, 544, v{vG1}
v_lshl_add_u32 v{aT1r}, v{vR}, 6, v{aT1r}
v_lshl_add_u32 v{aT1r}, v{vCq}, 3, v{aT1r}
v_mad_u32_u24 v{aT1r}, v{vGh}, s39, v{aT1r}
v_add_u32 v{aT1r}, s38, v{aT1r}
v_lshlrev_b32 v{aOut}, 6, v{vC}
v_lshl_add_u32 v{aOut}, v{vG}, 4, v{aOut}
""")
a.free(t)
stamp()
L1 = a.label("bs1")
a(f"s_cmp_eq_u32 {WV}, 8\ns_cbranch_scc1 {L1}\ns_waitcnt vmcnt(0)")
A = a.v(8); D = a.v(16); P4 = a.v(8)
for p in range(2):
    for e in range(2):
        a(f"ds_read_b64_tr_b16 {vr(A+4*p+2*e,2)}, v{aX1 if p else aX0} offset:{XT+8*e}")
for i in range(4):
    a(f"s_waitcnt lgkmcnt({3-i})")
    mfma16(D + 4 * i, A + 2 * i, F1)
for p in range(2):
    for i in range(4):
        cvt(P4 + 4 * p + i, D + 8 * p + 2 * i, D + 8 * p + 2 * i + 1)
    a(f"ds_write_b128 v{aT1w}, {vr(P4+4*p,4)} offset:{T1+64*p}")
a(f"{L1}:\ns_waitcnt lgkmcnt(0)\ns_barrier")
stamp()
for tau in range(2):
    for h in range(2):
        a(f"ds_read_b64_tr_b16 {vr(A+4*tau+2*h,2)}, v{aT1r} offset:{T1+256*h+32*tau}")
for tau in range(2):
    a(f"s_waitcnt lgkmcnt({2-2*tau})")
    mfma32(D + 8 * tau, A + 4 * tau, B2re, None)
    mfma32(D + 8 * tau + 4, A + 4 * tau, B2im, None)
tmp = a.v(4)
A3 = P4
for tau in range(2):
    for pr in range(2):
        for i in range(2):
            r = 2 * pr + i
            cmul(tmp + i, tmp + 2 + i, D + 8 * tau + r, D + 8 * tau + 4 + r, TW1c + 4 * tau + r, TW1s + 4 * tau + r, True)
        cvt(A3 + 2 * tau + pr, tmp, tmp + 1)
        cvt(A3 + 4 + 2 * tau + pr, tmp + 2, tmp + 3)
D3 = a.v(16)
for tt in range(2):
    mfma32(D3 + 8 * tt, A3, COS[tt], None)
    mfma32(D3 + 8 * tt + 4, A3, NSIN[tt], None)
for tt in range(2):
    mfma32(D3 + 8 * tt, A3 + 4, SIN[tt], D3 + 8 * tt)
    mfma32(D3 + 8 * tt + 4, A3 + 4, COS[tt], D3 + 8 * tt + 4)
a(f"""
s_lshr_b32 s38, {IDX}, 4
s_and_b32 s39, {IDX}, 7
s_bfe_u32 s40, {IDX}, 0x10003
s_lshl_b32 s51, s40, 3
s_cmp_eq_u32 s38, 0
s_cselect_b32 s51, s51, s38
s_cselect_b32 s40, 0, s40
s_mul_i32 s52, s51, 514
s_lshl_b32 s42, s39, 6
s_add_u32 s52, s52, s42
s_sub_u32 s43, {2048*514 + 2*(256-31)}, s52
s_lshl_b32 s55, {WV}, 3
s_sub_u32 s42, 56, s55
s_cmp_eq_u32 s40, 0
s_cselect_b32 s52, s52, s43
s_cselect_b32 s53, 1, -1
s_cselect_b32 s54, 0, 0x80008000
s_cselect_b32 s55, s55, s42
s_cselect_b32 s42, 0, 0x06060000
s_mul_i32 s53, s53, 8224
s_xor_b32 s56, s42, 0x01000c0c
s_xor_b32 s57, s42, 0x03020c0c
s_xor_b32 s58, s42, 0x05040c0c
s_xor_b32 s59, s42, 0x07060c0c
""")
a(f"v_cndmask_b32 v{D3+4}, v{D3+4}, v{D3+8}, s[48:49]")
GX = A
for tt in range(2):
    for i in range(4):
        cvt(GX + 4 * tt + i, D3 + 8 * tt + 2 * i, D3 + 8 * tt + 2 * i + 1)
    a(f"buffer_store_dwordx4 {vr(GX+4*tt,4)}, v{aOut}, {SRD}, s{46+tt} offen sc1")
old0, old1 = a.v(), a.v()
a(f"v_mov_b32 v{old0}, v{GX}\nv_or_b32 v{old1}, s50, v{GX+4}")
for r_, n_ in ((D, 16), (D3, 16), (P4, 8), (tmp, 4), (F1, 2), (B2re, 4), (B2im, 4), (TW1c, 8), (TW1s, 8), (aX0, 1), (aX1, 1), (aT1w, 1), (aT1r, 1)):
    a.free(r_, n_)
stamp()

LH = a.label("bhelp"); LP3 = a.label("bp3")
a(f"s_cmp_eq_u32 {WV}, 8\ns_cbranch_scc1 {LH}")
WRAW = a.v(8)
aW = a.v(); t = a.v()
a(f"v_and_b32 v{t}, 3, v0\nv_lshl_add_u32 v{t}, v{t}, 4, s52\nv_lshrrev_b32 v{aW}, 2, v0\nv_mad_i32_i24 v{t}, v{aW}, s53, v{t}")
a(f"global_load_dwordx4 {vr(WRAW,4)}, v{t}, {S_WR}{NT}\nglobal_load_dwordx4 {vr(WRAW+4,4)}, v{t}, {S_WI}{NT}")
a(f"v_mul_u32_u24 v{aW}, 80, v{aW}\nv_and_b32 v{t}, 3, v0\nv_lshl_add_u32 v{aW}, v{t}, 4, v{aW}")
a.free(t)
a.free(A, 8)
fF = a.v()
a(f"v_cvt_f32_u32 v{ang}, s51\nv_fmamk_f32 v{fF}, v{fC}, 0x41800000, v{ang}")
B1re, B1im = a.v(4), a.v(4)
a(f"v_mul_f32 v{stp}, 0x3b800000, v{fF}\nv_fma_f32 v{ang2}, v{fG1x8}, v{stp}, -v{fGhq}")
sincos_chain(8, ang2, stp, tc, ts)
for i in range(4):
    cvt(B1re + i, tc + 2 * i, tc + 2 * i + 1)
    cvt(B1im + i, ts + 2 * i, ts + 2 * i + 1, True, True)
TWa = a.v(4)
a(f"v_mul_f32 v{stp}, 0x3a000000, v{fF}\nv_mul_f32 v{ang2}, v{fG}, v{stp}\nv_mul_f32 v{stp}, 4.0, v{stp}")
sincos_chain(2, ang2, stp, TWa, TWa + 2)
A2 = a.v(2)
fH, fO = a.v(), a.v()
a(f"v_lshrrev_b32 v{fH}, 1, v{vC}\nv_and_b32 v{fO}, 1, v{vC}\nv_cvt_f32_u32 v{fH}, v{fH}\nv_cvt_f32_u32 v{fO}, v{fO}")
for i in range(4):
    a(f"v_mul_f32 v{TWa+i}, {f2u(2.0**-19)}, v{TWa+i}")
a(f"v_mul_f32 v{stp}, 0x3e000000, v{fH}\nv_mul_f32 v{ang2}, 0x3e800000, v{fO}\nv_fmac_f32 v{ang2}, v{fG}, v{stp}\nv_mul_f32 v{tc+7}, 4.0, v{stp}")
sincos_chain(2, ang2, tc + 7, tc, ts)
B3re, B3im = a.v(4), a.v(4)
a(f"v_mul_f32 v{ang2}, v{fG}, v{stp}\nv_add_f32 v{ang2}, v{ang2}, v{ang2}")
cvt(A2, tc, ts); cvt(A2 + 1, tc + 1, ts + 1)
sincos_chain(2, ang2, stp, tc, ts)
m0_, m1_ = tc + 6, tc + 7
a(f"v_and_b32 v{m0_}, 1, v{vC}\nv_add_u32 v{m0_}, -1, v{m0_}\nv_not_b32 v{m1_}, v{m0_}")
for l in range(2):
    cvt(tc + 2 + l, tc + l, ts + l, False, True)
    cvt(ts + 2 + l, ts + l, tc + l)
for l in range(2):
    a(f"v_and_b32 v{B3re+l}, v{m0_}, v{tc+2+l}\nv_and_b32 v{B3re+2+l}, v{m1_}, v{tc+2+l}")
    a(f"v_and_b32 v{B3im+l}, v{m0_}, v{ts+2+l}\nv_and_b32 v{B3im+2+l}, v{m1_}, v{ts+2+l}")
TWbc, TWbs = a.v(4), a.v(4)
a(f"v_fmamk_f32 v{fF}, v{fG}, 0x42800000, v{ang}")
a(f"v_mul_f32 v{stp}, 0x3a000000, v{fH}\nv_mul_f32 v{ang2}, v{fF}, v{stp}\nv_mul_f32 v{stp}, 0x41800000, v{stp}")
sincos_chain(4, ang2, stp, TWbc, TWbs)
B4 = a.v(6)
a(f"v_mul_f32 v{stp}, 0x3b800000, v{fC}\nv_mul_f32 v{ang2}, v{fF}, v{stp}\nv_mul_f32 v{stp}, 0x41800000, v{stp}")
sincos_chain(4, ang2, stp, tc, ts)
for i in range(2):
    cvt(B4 + i, ts + 2 * i, ts + 2 * i + 1)
    cvt(B4 + 2 + i, tc + 2 * i, tc + 2 * i + 1)
    cvt(B4 + 4 + i, ts + 2 * i, ts + 2 * i + 1, True, True)
a.free(fF); a.free(fH); a.free(fO)
aG, aXSw, aXSr, aWr, aZw, aZr = [a.v() for _ in range(6)]
t, t2 = a.v(), a.v()
a(f"""
v_lshrrev_b32 v{t}, 3, v0
v_and_b32 v{t2}, 7, v0
v_lshlrev_b32 v{aG}, 14, v{t}
v_lshl_add_u32 v{aG}, v{t2}, 4, v{aG}
v_mul_u32_u24 v{aXSw}, 144, v{t}
v_lshl_add_u32 v{aXSw}, v{t2}, 4, v{aXSw}
v_xor_b32 v{t2}, {WV}, v{t2}
v_lshlrev_b32 v{aZr}, 7, v{t}
v_lshl_add_u32 v{aZr}, v{t2}, 4, v{aZr}
v_lshrrev_b32 v{t}, 4, v{t}
v_lshl_add_u32 v{aXSw}, v{t}, 6, v{aXSw}
v_mul_u32_u24 v{aXSr}, {144*64+256}, v{vG1}
v_mul_u32_u24 v{t}, {144*8}, v{vR}
v_mul_u32_u24 v{t2}, 144, v{vCq}
v_add3_u32 v{aXSr}, v{aXSr}, v{t}, v{t2}
v_lshrrev_b32 v{t}, 1, v{vR}
v_lshl_add_u32 v{aXSr}, v{t}, 6, v{aXSr}
v_lshl_add_u32 v{aXSr}, v{vGh}, 3, v{aXSr}
s_lshl_b32 s38, {WV}, 4
v_add_u32 v{aXSr}, s38, v{aXSr}
v_lshl_add_u32 v{aWr}, v{vG}, 5, v{vC}
v_mul_u32_u24 v{aWr}, 80, v{aWr}
v_add_u32 v{aWr}, s55, v{aWr}
v_and_b32 v{t}, 7, v{vC}
v_xor_b32 v{t}, {WV}, v{t}
v_lshlrev_b32 v{aZw}, 10, v{vC}
v_lshl_add_u32 v{aZw}, v{vG}, 8, v{aZw}
v_lshl_add_u32 v{aZw}, v{t}, 4, v{aZw}
s_lshl_b32 s60, {IDX}, 7
s_add_u32 s61, s60, 0x100000
""")
SP = tc
for r_ in (fG1x8, fGhq, vG1, vGh, ang, stp, ang2):
    a.free(r_)
Lns, Lsd = a.label("nospec"), a.label("specdone")
a(f"s_and_b32 s38, {IDX}, 7\ns_or_b32 s62, s38, {WV}\ns_cmp_lg_u32 s62, 0\ns_cbranch_scc1 {Lns}")
for b in range(2):
    a(f"v_lshl_add_u32 v{t}, v{vG}, 5, v{vC}\nv_lshlrev_b32 v{t}, 4, v{t}\nv_add_u32 v{t}, s51, v{t}")
    if b:
        a(f"v_add_u32 v{t}, 256, v{t}")
    a(f"v_sub_u32 v{t2}, 2048, v{t}\nv_and_b32 v{t2}, 2047, v{t2}\nv_mul_u32_u24 v{t}, 514, v{t}\nv_mul_u32_u24 v{t2}, 514, v{t2}")
    for j, (ad, off) in enumerate(((t, 0), (t2, 0), (t, 512), (t2, 512))):
        a(f"global_load_ushort v{SP+8*b+2*j}, v{ad}, {S_WR} offset:{off}\nglobal_load_ushort v{SP+8*b+2*j+1}, v{ad}, {S_WI} offset:{off}")
a(f"s_waitcnt vmcnt(18)\ns_branch {Lsd}\n{Lns}:\ns_waitcnt vmcnt(2)\n{Lsd}:")
a.free(t); a.free(t2)
stamp()
a("s_barrier")
a("s_barrier")
stamp()
GI = a.v(8)
a(f"buffer_load_dwordx4 {vr(GI,4)}, v{aG}, {SRD}, s60 offen sc1\nbuffer_load_dwordx4 {vr(GI+4,4)}, v{aG}, {SRD}, s61 offen sc1")
a("s_waitcnt vmcnt(2)")
for i in range(4):
    a(f"v_xor_b32 v{WRAW+4+i}, s54, v{WRAW+4+i}")
a(f"ds_write_b128 v{aW}, {vr(WRAW,4)} offset:{WSL}\nds_write_b128 v{aW}, {vr(WRAW+4,4)} offset:{WSL+10240}")
Lns2 = a.label("nospec")
MA = a.v(4)
a(f"s_cmp_lg_u32 s62, 0\ns_cbranch_scc1 {Lns2}")
a(f"""
s_lshr_b32 s38, {IDX}, 4
s_cmp_eq_u32 s54, 0
s_cselect_b32 s39, 0.5, 0
s_cselect_b32 s40, 0, 0.5
s_cmp_eq_u32 s38, 0
s_cselect_b32 s39, {f2u(0.125)}, s39
s_cselect_b32 s40, {f2u(0.125)}, s40
s_cselect_b32 s42, {f2u(0.125)}, 0
""")
for i in range(16):
    a(f"v_lshlrev_b32 v{SP+i}, 16, v{SP+i}")
for b in range(2):
    s = SP + 8 * b
    a(f"v_add_f32 v{s}, v{s}, v{s+2}\nv_sub_f32 v{s+1}, v{s+1}, v{s+3}\nv_add_f32 v{s+4}, v{s+4}, v{s+6}\nv_sub_f32 v{s+5}, v{s+5}, v{s+7}")
    a(f"v_sub_f32 v{s+2}, v{s}, v{s+4}\nv_sub_f32 v{s+3}, v{s+1}, v{s+5}\nv_mul_f32 v{s+2}, s42, v{s+2}\nv_mul_f32 v{s+3}, s42, v{s+3}")
    a(f"v_mul_f32 v{s}, s39, v{s}\nv_mul_f32 v{s+1}, s39, v{s+1}\nv_fmac_f32 v{s}, s40, v{s+4}\nv_fmac_f32 v{s+1}, s40, v{s+5}")
a("s_lshr_b32 s38, s51, 3\ns_sub_u32 s38, 128, s38")
for b in range(2):
    s = SP + 8 * b
    a(f"v_lshl_add_u32 v{s+4}, v{vG}, 5, v{vC}\nv_sub_u32 v{s+4}, s38, v{s+4}")
    if b:
        a(f"v_add_u32 v{s+4}, -16, v{s+4}")
    a(f"v_and_b32 v{s+5}, 15, v{s+4}\nv_bfe_u32 v{s+6}, v{s+4}, 5, 2\nv_lshl_add_u32 v{s+5}, v{s+6}, 4, v{s+5}\nv_lshlrev_b32 v{MA+b}, 2, v{s+5}\nv_bfe_u32 v{MA+2+b}, v{s+4}, 4, 1")
a(f"{Lns2}:")
a("s_waitcnt vmcnt(0)")
a(f"ds_write_b128 v{aXSw}, {vr(GI,4)} offset:{XS}\nds_write_b128 v{aXSw}, {vr(GI+4,4)} offset:{XS+9472}")
nold0, nold1 = a.v(), a.v()
a(f"v_not_b32 v{nold0}, v{GI}\nv_not_b32 v{nold1}, v{GI+4}")
a("s_waitcnt lgkmcnt(0)\ns_barrier")
stamp()
A1 = GI
for tau in range(2):
    for h in range(2):
        a(f"ds_read_b64_tr_b16 {vr(A1+4*tau+2*h,2)}, v{aXSr} offset:{XS+4736*h+576*tau}")
for part in range(2):
    for b in range(2):
        a(f"ds_read_b64 {vr(WRAW+4*part+2*b,2)}, v{aWr} offset:{WSL+10240*part+1280*b}")
D = a.v(16); D2 = a.v(16); tmp = a.v(4); BQ = a.v(8)
for tau in range(2):
    a(f"s_waitcnt lgkmcnt({6-2*tau})")
    mfma32(D + 8 * tau, A1 + 4 * tau, B1re, None)
    mfma32(D + 8 * tau + 4, A1 + 4 * tau, B1im, None)
for q in range(4):
    for tau in range(2):
        cmul(tmp + 2 * tau, tmp + 2 * tau + 1, D + 8 * tau + q, D + 8 * tau + 4 + q, TWa + tau, TWa + 2 + tau, True)
    for tau in range(2):
        cvt(BQ + 2 * q + tau, tmp + 2 * tau, tmp + 2 * tau + 1)
    if q:
        mfma16(D2 + 4 * (q - 1), A2, BQ + 2 * (q - 1))
mfma16(D2 + 12, A2, BQ + 6)
WU = D
a("s_waitcnt lgkmcnt(0)")
for q in range(4):
    for b in range(2):
        for part in range(2):
            w_ = WRAW + 4 * part + 2 * b
            a(f"v_perm_b32 v{WU+4*q+2*b+part}, v{w_+1}, v{w_}, s{56+q}")
Lns3 = a.label("nospec")
MB = WRAW
a(f"s_cmp_lg_u32 s62, 0\ns_cbranch_scc1 {Lns3}")
for b in range(2):
    for i in range(4):
        a(f"ds_bpermute_b32 v{MB+4*b+i}, v{MA+b}, v{D2+i}")
for b in range(2):
    a(f"v_mov_b32 v{WU+2*b}, v{SP+8*b}\nv_mov_b32 v{WU+2*b+1}, v{SP+8*b+1}")
a(f"{Lns3}:")
AI = A1
for q in (1, 2, 3, 0):
    for b in range(2):
        cmul(tmp + 2 * b, tmp + 2 * b + 1, D2 + 4 * q + 2 * b, D2 + 4 * q + 2 * b + 1, WU + 4 * q + 2 * b, WU + 4 * q + 2 * b + 1, False)
    if q == 0:
        Lns4 = a.label("nospec")
        a(f"s_cmp_lg_u32 s62, 0\ns_cbranch_scc1 {Lns4}\ns_waitcnt lgkmcnt(0)")
        for b in range(2):
            s = SP + 8 * b
            a(f"v_cmp_eq_u32 vcc, 1, v{MA+2+b}\nv_cndmask_b32 v{MB+4*b}, v{MB+4*b}, v{MB+4*b+2}, vcc\nv_cndmask_b32 v{MB+4*b+1}, v{MB+4*b+1}, v{MB+4*b+3}, vcc")
            a(f"v_fmac_f32 v{tmp+2*b}, v{MB+4*b}, v{s+2}\nv_fmac_f32 v{tmp+2*b+1}, v{MB+4*b}, v{s+3}")
            a(f"v_fmac_f32 v{tmp+2*b}, v{MB+4*b+1}, v{s+3}\nv_fma_f32 v{tmp+2*b+1}, -v{MB+4*b+1}, v{s+2}, v{tmp+2*b+1}")
        a(f"{Lns4}:")
    for b in range(2):
        cvt(AI + 2 * q + b, tmp + 2 * b, tmp + 2 * b + 1)
    if q == 3:
        mfma32(D + 8, AI + 4, B3re, None)
        mfma32(D + 12, AI + 4, B3im, None)
mfma32(D2, AI, B3re, None)
mfma32(D2 + 4, AI, B3im, None)
A4 = BQ
D4 = (D2 + 8, D)
for p2, src in ((1, D + 8), (0, D2)):
    for pr in range(2):
        for i in range(2):
            r = 2 * pr + i
            cmul(tmp + i, tmp + 2 + i, src + r, src + 4 + r, TWbc + r, TWbs + r, False)
        cvt(A4 + 4 * p2 + pr, tmp, tmp + 1)
        cvt(A4 + 4 * p2 + 2 + pr, tmp + 2, tmp + 3)
    mfma32(D4[p2], A4 + 4 * p2, B4 + 2, None)
    mfma32(D4[p2] + 4, A4 + 4 * p2, B4, None)
GO = GI
for b in range(2):
    cvt(GO + 4 * b + 1, D4[1] + 2 * b, D4[1] + 2 * b + 1)
    cvt(GO + 4 * b + 3, D4[1] + 4 + 2 * b, D4[1] + 4 + 2 * b + 1)
for b in range(2):
    cvt(GO + 4 * b, D4[0] + 2 * b, D4[0] + 2 * b + 1)
    cvt(GO + 4 * b + 2, D4[0] + 4 + 2 * b, D4[0] + 4 + 2 * b + 1)
    a(f"ds_write_b128 v{aZw}, {vr(GO+4*b,4)} offset:{ZS+128*b}")
a("s_waitcnt lgkmcnt(0)\ns_barrier")
a(f"ds_read_b128 {vr(GO,4)}, v{aZr} offset:{ZS}\nds_read_b128 {vr(GO+4,4)}, v{aZr} offset:{ZS+8192}")
a(f"s_waitcnt lgkmcnt(1)\nv_bfi_b32 v{GO}, 1, v{nold0}, v{GO}\nbuffer_store_dwordx4 {vr(GO,4)}, v{aG}, {SRD}, s60 offen sc1")
a(f"s_waitcnt lgkmcnt(0)\nv_bfi_b32 v{GO+4}, 1, v{nold1}, v{GO+4}\nbuffer_store_dwordx4 {vr(GO+4,4)}, v{aG}, {SRD}, s61 offen sc1")
a(f"s_branch {LP3}")
for r_, n_ in ((D, 16), (D2, 16), (tmp, 4), (BQ, 8), (GI, 8), (WRAW, 8), (MA, 4), (B1re, 4), (B1im, 4), (TWa, 4), (A2, 2),
               (B3re, 4), (B3im, 4), (TWbc, 4), (TWbs, 4), (B4, 6), (aW, 1), (aG, 1), (aXSw, 1), (aXSr, 1), (aWr, 1), (aZw, 1), (aZr, 1), (nold0, 1), (nold1, 1)):
    a.free(r_, n_)
sv = nstamp[0]
nstamp[0] = sv - 3 if STAMP else 0
a(f"{LH}:\ns_waitcnt vmcnt(0)\nv_add_u32 v{vEp}, 1, v{vEp}")
stamp()
a("s_barrier")
helper_flags(WS_FLB, WS_EB, vEp)
helper_poll(WS_FLB, WS_EB, vEp, vL)
a("s_barrier")
stamp()
a("s_barrier")
stamp()
a("s_barrier")
a(f"{LP3}:")
stamp()
TW3c, TW3s = a.v(8), a.v(8)
ang, stp, ang2 = a.v(), a.v(), a.v()
a(f"v_mul_f32 v{stp}, 0x3b000000, v{fC}\nv_mul_f32 v{ang}, v{fG}, v{stp}\nv_mul_f32 v{ang}, 4.0, v{ang}")
sincos_chain(4, ang, stp, TW3c, TW3s)
a(f"v_add_f32 v{stp}, 0x3d000000, v{stp}\nv_mul_f32 v{ang}, v{fG}, v{stp}\nv_mul_f32 v{ang}, 4.0, v{ang}")
sincos_chain(4, ang, stp, TW3c + 4, TW3s + 4)
B6 = a.v(6)
a(f"v_mul_f32 v{stp}, 0x3d800000, v{fC}\nv_mul_f32 v{ang}, v{fG}, v{stp}\nv_mul_f32 v{ang}, 4.0, v{ang}")
sincos_chain(4, ang, stp, tc, ts)
for i in range(2):
    cvt(B6 + i, ts + 2 * i, ts + 2 * i + 1)
    cvt(B6 + 2 + i, tc + 2 * i, tc + 2 * i + 1)
    cvt(B6 + 4 + i, ts + 2 * i, ts + 2 * i + 1, True, True)
F2 = a.v(2)
a(f"""
v_mul_f32 v{ang}, v{fG}, v{stp}
v_add_f32 v{ang}, v{ang}, v{ang}
v_add_f32 v{ang2}, v{ang}, v{stp}
v_cos_f32 v{tc}, v{ang}
v_sin_f32 v{tc+1}, v{ang}
v_cos_f32 v{tc+2}, v{ang2}
v_sin_f32 v{tc+3}, v{ang2}
v_mul_f32 v{ang}, 0.5, v{fC}
v_cos_f32 v{tc+4}, v{ang}
v_cmp_eq_u32 vcc, 0, v{vG}
v_cndmask_b32 v{tc+1}, v{tc+1}, -v{tc+4}, vcc
""")
cvt(F2, tc, tc + 1, False, True); cvt(F2 + 1, tc + 2, tc + 3, False, True)
aZTw, aZTr, aT2a, aT2b, aT2r, aO = [a.v() for _ in range(6)]
t = a.v()
a(f"""
s_mul_i32 s38, {WV}, 2560
v_mul_u32_u24 v{aZTw}, 40, v{vC}
v_lshl_add_u32 v{aZTw}, v{vG}, 3, v{aZTw}
v_add_u32 v{aZTw}, s38, v{aZTw}
v_lshl_add_u32 v{t}, v{vG}, 2, v{vR}
v_mul_u32_u24 v{aZTr}, 40, v{t}
v_lshl_add_u32 v{aZTr}, v{vCq}, 3, v{aZTr}
v_add_u32 v{aZTr}, s38, v{aZTr}
s_mul_i32 s38, s44, {S2}
s_mul_i32 s39, s45, {S2}
v_mul_u32_u24 v{aT2a}, 72, v{vC}
v_lshl_add_u32 v{aT2a}, v{vG}, 3, v{aT2a}
v_add_u32 v{aT2b}, s39, v{aT2a}
v_add_u32 v{aT2a}, s38, v{aT2a}
s_mul_i32 s38, {WV}, 144
v_mul_u32_u24 v{aT2r}, {S2}, v{t}
v_lshl_add_u32 v{aT2r}, v{vCq}, 4, v{aT2r}
v_add_u32 v{aT2r}, s38, v{aT2r}
s_lshl_b32 s38, {IDX}, 11
s_lshl_b32 s39, {WV}, 7
s_add_u32 s38, s38, s39
s_add_u32 s38, s38, 1024
v_lshlrev_b32 v{aO}, 18, v{vC}
v_lshl_add_u32 v{aO}, v{vG}, 4, v{aO}
v_add_u32 v{aO}, s38, v{aO}
s_waitcnt vmcnt(0)
""")
if opt["pslp"]:
    a(f"s_sleep {opt['pslp']}")
stamp()
GZ = a.v(8)
poll_toggle(GZ, GZ + 4, aOut, "s46", "s47", old0, old1)
stamp()
a(f"v_and_b32 v{t}, 0xffff, v{GZ+2}\nv_cndmask_b32 v{GZ+4}, v{GZ+4}, v{t}, s[48:49]")
a.free(t)
for tt in range(2):
    for part in range(2):
        a(f"ds_write_b64 v{aZTw}, {vr(GZ+4*tt+2*part,2)} offset:{ZT+640*tt+1280*part}")
A5 = a.v(8)
for part in range(2):
    for h in range(2):
        a(f"ds_read_b64_tr_b16 {vr(A5+4*part+2*h,2)}, v{aZTr} offset:{ZT+640*h+1280*part}")
D = a.v(16); D3 = a.v(16); tmp = a.v(4)
a("s_waitcnt lgkmcnt(2)")
for tau in range(2):
    mfma32(D + 8 * tau, A5, COS[tau], None)
    mfma32(D + 8 * tau + 4, A5, SIN[tau], None)
a("s_waitcnt lgkmcnt(0)")
for tau in range(2):
    mfma32(D + 8 * tau, A5 + 4, NSIN[tau], D + 8 * tau)
    mfma32(D + 8 * tau + 4, A5 + 4, COS[tau], D + 8 * tau + 4)
A6 = GZ
for tau in range(2):
    for pr in range(2):
        for i in range(2):
            r = 2 * pr + i
            cmul(tmp + i, tmp + 2 + i, D + 8 * tau + r, D + 8 * tau + 4 + r, TW3c + 4 * tau + r, TW3s + 4 * tau + r, False)
        cvt(A6 + 4 * tau + pr, tmp, tmp + 1)
        cvt(A6 + 4 * tau + 2 + pr, tmp + 2, tmp + 3)
    mfma32(D3 + 8 * tau, A6 + 4 * tau, B6 + 2, None)
    mfma32(D3 + 8 * tau + 4, A6 + 4 * tau, B6, None)
for tau in range(2):
    for part in range(2):
        o_ = A5 + 4 * tau + 2 * part
        cvt(o_, D3 + 8 * tau + 4 * part, D3 + 8 * tau + 4 * part + 1)
        cvt(o_ + 1, D3 + 8 * tau + 4 * part + 2, D3 + 8 * tau + 4 * part + 3)
        a(f"ds_write_b64 v{aT2b if part else aT2a}, {vr(o_,2)} offset:{T2+32*tau}")
a(f"s_waitcnt lgkmcnt(0)\ns_barrier")
stamp()
a(f"s_cmp_eq_u32 {WV}, 8\ns_cbranch_scc1 L_fin")
for p in range(2):
    for e in range(2):
        a(f"ds_read_b64_tr_b16 {vr(A5+4*p+2*e,2)}, v{aT2r} offset:{T2+72*p+8*e}")
for i in range(4):
    a(f"s_waitcnt lgkmcnt({3-i})")
    mfma16(D + 4 * i, A5 + 2 * i, F2)
for p in range(2):
    for i in range(4):
        cvt(GZ + 4 * p + i, D + 8 * p + 2 * i, D + 8 * p + 2 * i + 1)
    a(f"global_store_dwordx4 v{aO}, {vr(GZ+4*p,4)}, {S_OUT} offset:{64*p} sc1")
stamp()
if STAMP:
    a("s_waitcnt vmcnt(0)")
stamp()
a("s_branch L_fin")
vmax_spec = a.vmax

a.vfree = set(common_free)
a.vmax = 0
nstamp[0] = common_stamp
a(".p2align 6\nL_conv:")
vEp = a.v(2)
LH = a.label("ahelp")
a(f"s_cmp_eq_u32 {WV}, 8\ns_cbranch_scc1 {LH}")
PR = a.v(7); DSK = a.v(2)
t, t2 = a.v(), a.v()
vG1, vGh = a.v(), a.v()
a(f"""
s_lshr_b32 s44, {WV}, 1
s_lshl_b32 s38, {IDX}, 2
s_add_u32 s38, s38, s44
s_lshl_b32 s39, s38, 8
s_and_b32 s40, {WV}, 1
s_lshl_b32 s40, s40, 7
s_add_u32 s39, s39, s40
v_lshl_add_u32 v{t}, v{vL}, 1, s39
s_lshl_b32 s38, s38, 1
v_mov_b32 v{t2}, s38
""")
a(f"global_load_ushort v{PR+6}, v{t2}, {S_LDT}")
for i, s in enumerate((S_ARE, S_AIM, S_BRE, S_BIM, S_CRE, S_CIM)):
    a(f"global_load_ushort v{PR+i}, v{t}, {s}{NT}")
a(f"""
v_and_b32 v{vG1}, 1, v{vG}
v_lshrrev_b32 v{vGh}, 1, v{vG}
s_lshl_b32 s38, {WV}, 7
v_lshl_add_u32 v{t}, v{vGh}, 4, v{vC}
v_lshl_add_u32 v{t}, v{t}, 1, s38
global_load_ushort v{DSK}, v{t}, {S_DSK}
global_load_ushort v{DSK+1}, v{t}, {S_DSK} offset:64
""")
z = a.v(4)
a(f"v_mov_b32 v{z}, 0\nv_mov_b32 v{z+1}, 0\nv_mov_b32 v{z+2}, 0\nv_mov_b32 v{z+3}, 0\nv_lshlrev_b32 v{t}, 4, v0")
a(f"ds_write_b128 v{t}, {vr(z,4)} offset:{KC}\nds_write_b128 v{t}, {vr(z,4)} offset:{KC+8192}")
a(f"v_lshrrev_b32 v{t}, 7, v0\nv_mul_u32_u24 v{t}, {UTS}, v{t}\nv_and_b32 v{t2}, 127, v0\nv_lshl_add_u32 v{t}, v{t2}, 2, v{t}\nds_write_b32 v{t}, v{z} offset:{UT}")
a.free(z, 4)
vR, vCq = a.v(), a.v()
aU0, aU1, aUo = a.v(), a.v(), a.v()
a(f"""
v_bfe_u32 v{vR}, v{vL}, 2, 2
v_and_b32 v{vCq}, 3, v{vL}
v_lshlrev_b32 v{t}, 1, v{vR}
v_and_b32 v{t}, 4, v{t}
v_lshl_add_u32 v{t}, v{vG1}, 1, v{t}
v_lshrrev_b32 v{t2}, 1, v{vCq}
v_lshl_add_u32 v{t2}, v{vGh}, 1, v{t2}
v_xor_b32 v{t}, v{t}, v{t2}
v_lshlrev_b32 v{aU0}, 4, v{t}
v_and_b32 v{t}, 1, v{vCq}
v_lshl_add_u32 v{aU0}, v{t}, 3, v{aU0}
v_lshl_add_u32 v{t}, v{vG1}, 3, v{vR}
v_lshl_add_u32 v{aU0}, v{t}, 7, v{aU0}
v_add_u32 v{aU0}, s41, v{aU0}
v_xor_b32 v{aU1}, 64, v{aU0}
v_lshrrev_b32 v{t}, 2, v{vC}
v_lshl_add_u32 v{t}, v{vGh}, 2, v{t}
v_lshlrev_b32 v{aUo}, 7, v{t}
v_lshl_add_u32 v{aUo}, v{vG1}, 6, v{aUo}
v_and_b32 v{t}, 3, v{vC}
v_lshl_add_u32 v{aUo}, v{t}, 4, v{aUo}
s_lshl_b32 s46, {IDX}, 14
s_add_u32 s46, s46, s41
s_add_u32 s46, s46, {WS_U}
""")
EX = a.v(9)
a(f"v_and_b32 v{t}, 255, v0\nv_lshlrev_b32 v{t}, 3, v{t}\nv_sub_u32 v{t}, 2047, v{t}\nv_lshrrev_b32 v{t2}, 8, v0\nv_mul_u32_u24 v{t2}, {2*KCS}, v{t2}")
t3 = a.v(2)
for e in range(9):
    a(f"""
v_cvt_f32_i32 v{t3}, v{t}
v_cmp_gt_i32 vcc, 128, v{t}
v_cvt_pk_bf16_f32 v{t3}, v{t3}, v{t3}
v_and_b32 v{t3}, 0xffff, v{t3}
v_add_u32 v{t3}, {128-(134<<7)}, v{t3}
v_cndmask_b32 v{t3}, v{t3}, v{t}, vcc
""")
    if e == 8:
        a(f"v_min_u32 v{t3}, 768, v{t3}")
    a(f"v_lshl_add_u32 v{EX+e}, v{t3}, 2, v{t2}")
    if e < 8:
        a(f"v_add_u32 v{t}, -1, v{t}")
a.free(t3, 2)
a("s_waitcnt lgkmcnt(0)\ns_barrier")
stamp()
UG = a.v(8)
a("s_waitcnt vmcnt(9)")
for p in range(2):
    for hh in range(2):
        a(f"ds_read_b64_tr_b16 {vr(UG+4*p+2*hh,2)}, v{aU1 if p else aU0} offset:{UT0+512*hh}")
for p in range(2):
    a(f"s_waitcnt lgkmcnt({2-2*p})\nbuffer_store_dwordx4 {vr(UG+4*p,4)}, v{aUo}, {SRD}, s46 offen offset:{1024*p} sc1")
a.free(aU0); a.free(aU1)
stamp()
aEw, aEr = a.v(), a.v()
a(f"""
s_mul_i32 s38, {WV}, 4608
s_add_u32 s38, s38, {EB}
v_lshl_add_u32 v{aEw}, v{vL}, 2, s38
v_mul_u32_u24 v{aEr}, 288, v{vC}
v_lshl_add_u32 v{aEr}, v{vG}, 4, v{aEr}
v_add_u32 v{aEr}, s38, v{aEr}
s_waitcnt vmcnt(2)
""")
for i in range(7):
    a(f"v_lshlrev_b32 v{PR+i}, 16, v{PR+i}")
dt = PR + 6
LOG2E = 1.4426950408889634
import struct
hi = struct.unpack("<f", struct.pack("<f", LOG2E))[0]
a(f"""
s_mov_b32 s38, {f2u(LOG2E)}
v_mul_f32 v{t}, s38, v{dt}
v_fma_f32 v{t2}, v{dt}, s38, -v{t}
v_fmamk_f32 v{t2}, v{dt}, {f2u(LOG2E-hi)}, v{t2}
v_exp_f32 v{t}, v{t}
v_mul_f32 v{t2}, {f2u(0.6931471805599453)}, v{t2}
v_fma_f32 v{t}, v{t}, v{t2}, v{t}
v_cvt_pk_bf16_f32 v{dt}, v{t}, v{t}
v_and_b32 v{dt}, 0xffff0000, v{dt}
v_mul_f32 v{PR}, v{dt}, v{PR}
v_mul_f32 v{PR+1}, v{dt}, v{PR+1}
v_mul_f32 v{PR+2}, v{dt}, v{PR+2}
v_mul_f32 v{PR+3}, v{dt}, v{PR+3}
v_mul_f32 v{PR}, s38, v{PR}
v_mul_f32 v{PR+1}, 0.15915494, v{PR+1}
""")
EE = a.v(6)
SS = a.v(16)
cmul(SS, SS + 1, PR + 4, PR + 5, PR + 2, PR + 3, False)
for i, l in enumerate((1.0, 8.0, 128.0)):
    a(f"v_mul_f32 v{t}, {f2u(l)}, v{PR}\nv_mul_f32 v{t2}, {f2u(l)}, v{PR+1}\nv_exp_f32 v{t}, v{t}\nv_fract_f32 v{t2}, v{t2}")
    a(f"v_cos_f32 v{EE+2*i}, v{t2}\nv_sin_f32 v{EE+2*i+1}, v{t2}\nv_mul_f32 v{EE+2*i}, v{t}, v{EE+2*i}\nv_mul_f32 v{EE+2*i+1}, v{t}, v{EE+2*i+1}")
pk = a.v(2); pa, pb = a.v(2), a.v(2)
a(f"v_mov_b32 v{pk}, 0x3f80\nds_write_b32 v{aEw}, v{pk}")
cvt(pk + 1, EE + 2, EE + 3, False, True)
a(f"ds_write_b32 v{aEw}, v{pk+1} offset:288")
cur = EE + 2
for c in range(2, 16):
    nxt = pa if c % 2 == 0 else pb
    cmul(nxt, nxt + 1, cur, cur + 1, EE + 2, EE + 3, False)
    cvt(pk + c % 2, nxt, nxt + 1, False, True)
    a(f"ds_write_b32 v{aEw}, v{pk+c%2} offset:{288*c}")
    cur = nxt
BF, AF = a.v(16), a.v(16)
for k in range(4):
    a(f"ds_read_b128 {vr(BF+4*k,4)}, v{aEr} offset:{64*k}")
KD = a.v(12)
nrow = [0]


def put_row(src):
    cvt(pk + nrow[0] % 2, src, src + 1)
    a(f"ds_write_b32 v{aEw}, v{pk+nrow[0]%2} offset:{288*(nrow[0]%16)}")
    nrow[0] += 1


def advance(i):
    s = SS + 2 * i
    cmul(pa, pa + 1, s, s + 1, EE + 4, EE + 5, False)
    a(f"v_mov_b32 v{s}, v{pa}\nv_mov_b32 v{s+1}, v{pa+1}")
    put_row(pa)


def read_tile():
    for k in range(4):
        a(f"ds_read_b128 {vr(AF+4*k,4)}, v{aEr} offset:{64*k}")


def mma_tile(T, pending):
    a(f"s_waitcnt lgkmcnt({pending})")
    for k in range(4):
        mfma32(KD + 4 * T, AF + 4 * k, BF + 4 * k, KD + 4 * T if k else None)


put_row(SS)
for i in range(1, 8):
    cmul(SS + 2 * i, SS + 2 * i + 1, SS + 2 * i - 2, SS + 2 * i - 1, EE, EE + 1, False)
    put_row(SS + 2 * i)
for i in range(8):
    advance(i)
read_tile()
for q in range(2):
    for i in (0, 2, 4, 6):
        advance(i)
mma_tile(0, 8)
a("s_waitcnt vmcnt(0)")
stamp()
a("s_barrier")
for q in range(4):
    for i in (0, 4):
        advance(i)
read_tile()
for q in range(5):
    advance(0)
mma_tile(1, 5)
for q in range(4):
    advance(0)
read_tile()
aK = a.v(4)
a(f"""
s_mul_i32 s38, s44, {KCS}
s_add_u32 s38, s38, {KC}
v_lshlrev_b32 v{t}, 7, v{vGh}
v_lshl_add_u32 v{t}, v{vG1}, 2, v{t}
v_lshl_add_u32 v{t}, v{vC}, 3, v{t}
v_lshl_add_u32 v{aK}, v{t}, 2, s38
v_lshlrev_b32 v{t}, 6, v{vG}
v_sub_u32 v{t2}, 2, v{vGh}
v_lshlrev_b32 v{t2}, v{t2}, v{vC}
v_add3_u32 v{t}, v{t}, v{t2}, 256
v_lshl_add_u32 v{aK+1}, v{t}, 2, s38
v_mul_u32_u24 v{t}, 120, v{vGh}
v_add3_u32 v{aK+2}, v{aK+1}, v{t}, 8
v_lshl_add_u32 v{t}, v{vG}, 6, v{vC}
v_lshl_add_u32 v{aK+3}, v{t}, 2, s38
""".replace("v_add3_u32 v%d, v%d, v%d, 256" % (t, t, t2), "v_add_u32 v%d, v%d, v%d\nv_add_u32 v%d, 256, v%d" % (t, t, t2, t, t)))
mma_tile(2, 0)
aH = aEw
Lodd, Lred = a.label("odd"), a.label("red")
a(f"s_lshl_b32 s38, s44, 12\ns_add_u32 s38, s38, {UT0}\nv_lshl_add_u32 v{aH}, v{vL}, 4, s38\ns_and_b32 s38, {WV}, 1\ns_cmp_eq_u32 s38, 0\ns_cbranch_scc1 {Lodd}")
for T in range(3):
    a(f"ds_write_b128 v{aH}, {vr(KD+4*T,4)} offset:{1024*T}")
a(f"{Lodd}:\ns_waitcnt lgkmcnt(0)\ns_barrier\ns_cbranch_scc0 {Lred}")
for T in range(3):
    a(f"ds_read_b128 {vr(AF+4*T,4)}, v{aH} offset:{1024*T}")
for T in range(3):
    a(f"s_waitcnt lgkmcnt({2-T if T == 0 else (2 if T == 1 else 3)})")
    for r in range(4):
        a(f"v_add_f32 v{KD+4*T+r}, v{KD+4*T+r}, v{AF+4*T+r}")
    if T == 0:
        a(f"ds_write_b128 v{aK}, {vr(KD,4)}")
    elif T == 1:
        a(f"ds_write_b64 v{aK+1}, {vr(KD+4,2)}\nds_write_b64 v{aK+2}, {vr(KD+6,2)}")
    else:
        for r in range(4):
            a(f"ds_write_b32 v{aK+3}, v{KD+8+r} offset:{2048+64*r}")
a(f"{Lred}:\ns_waitcnt lgkmcnt(0)\ns_barrier")
stamp()
for r_, n_ in ((PR, 7), (EE, 6), (SS, 16), (pk, 2), (pa, 2), (pb, 2), (BF, 16), (AF, 16), (KD, 12), (aK, 4), (aEw, 1), (aEr, 1)):
    a.free(r_, n_)
KV = a.v(18); RW = a.v(8); aR = a.v()
for dd in range(2):
    for e in range(9):
        a(f"ds_read_b32 v{KV+9*dd+e}, v{EX+e} offset:{KC+KCS*dd}")
a(f"v_lshrrev_b32 v{t}, 8, v0\nv_mul_u32_u24 v{aR}, 16640, v{t}\nv_and_b32 v{t}, 255, v0\nv_lshl_add_u32 v{aR}, v{t}, 4, v{aR}")
a(f"v_lshrrev_b32 v{t}, 6, v0\nv_mul_u32_u24 v{t}, 4160, v{t}\nv_and_b32 v{t2}, 7, v0\nv_lshl_add_u32 v{t}, v{t2}, 2, v{t}\nv_mov_b32 v{t2}, 0")
for dd in range(2):
    a(f"s_waitcnt lgkmcnt({9 if dd == 0 else 2})")
    for i in range(4):
        cvt(RW + i, KV + 9 * dd + 2 * i, KV + 9 * dd + 2 * i + 1)
        cvt(RW + 4 + i, KV + 9 * dd + 2 * i + 1, KV + 9 * dd + 2 * i + 2)
    a(f"ds_write_b128 v{aR}, {vr(RW,4)} offset:{RT+8320*dd}\nds_write_b128 v{aR}, {vr(RW+4,4)} offset:{RT+8320*dd+4160}")
a(f"ds_write_b32 v{t}, v{t2} offset:{RT+4096}")
a.free(KV, 18); a.free(RW, 8); a.free(aR); a.free(EX, 9)
SK = a.v(16)
for p in range(2):
    a(f"v_lshlrev_b32 v{DSK+p}, 16, v{DSK+p}")
    for i in range(4):
        s = SK + 8 * p + 2 * i
        a(f"v_lshlrev_b32 v{s}, 16, v{UG+4*p+i}\nv_and_b32 v{s+1}, 0xffff0000, v{UG+4*p+i}\nv_mul_f32 v{s}, v{DSK+p}, v{s}\nv_mul_f32 v{s+1}, v{DSK+p}, v{s+1}")
        cvt(s + 1, s, s + 1)
        a(f"v_lshlrev_b32 v{s}, 16, v{s+1}\nv_and_b32 v{s+1}, 0xffff0000, v{s+1}")
old0, old1 = a.v(), a.v()
a(f"v_mov_b32 v{old0}, v{UG}\nv_mov_b32 v{old1}, v{UG+4}")
a.free(UG, 8); a.free(DSK, 2)
aG, aUTw, aYr, aYw, aUf = [a.v() for _ in range(5)]
aT = a.v(4)
a(f"""
v_lshrrev_b32 v{t}, 3, v0
v_and_b32 v{t2}, 7, v0
v_lshlrev_b32 v{aG}, 14, v{t}
v_lshl_add_u32 v{aG}, v{t2}, 4, v{aG}
v_and_b32 v{aYr}, 7, v{t}
v_xor_b32 v{aYr}, v{aYr}, v{t2}
v_lshlrev_b32 v{aYr}, 4, v{aYr}
v_lshl_add_u32 v{aYr}, v{t}, 7, v{aYr}
v_lshlrev_b32 v{aUTw}, 5, v{t}
v_and_b32 v{t}, 3, v0
v_mul_u32_u24 v{t}, {UTS}, v{t}
v_lshrrev_b32 v{t2}, 2, v{t2}
v_lshl_add_u32 v{t}, v{t2}, 4, v{t}
v_add_u32 v{aUTw}, v{aUTw}, v{t}
s_lshl_b32 s60, {IDX}, 7
s_add_u32 s60, s60, {WS_U}
s_add_u32 s61, s60, 0x100000
v_lshl_add_u32 v{t}, v{vGh}, 2, {WV}
v_and_b32 v{t2}, 7, v{vC}
v_xor_b32 v{t}, v{t}, v{t2}
v_lshlrev_b32 v{aYw}, 4, v{t}
v_lshl_add_u32 v{aYw}, v{vG1}, 3, v{aYw}
v_lshl_add_u32 v{aYw}, v{vC}, 7, v{aYw}
s_mul_i32 s38, {WV}, {UTS}
s_add_u32 s38, s38, {UT+480}
v_lshlrev_b32 v{aUf}, 5, v{vC}
v_lshl_add_u32 v{aUf}, v{vG}, 4, v{aUf}
v_add_u32 v{aUf}, s38, v{aUf}
s_mul_i32 s38, {WV}, 8320
s_add_u32 s38, s38, {RT+4160-512}
v_sub_u32 v{t}, 2031, v{vC}
v_lshrrev_b32 v{t2}, 1, v{t}
v_lshl_add_u32 v{t2}, v{vG}, 2, v{t2}
v_lshl_add_u32 v{t2}, v{t2}, 2, s38
v_and_b32 v{t}, 1, v{vC}
v_mul_u32_u24 v{t}, 4160, v{t}
v_sub_u32 v{aT}, v{t2}, v{t}
v_add_u32 v{aT+1}, -1024, v{aT}
v_add_u32 v{aT+2}, -2048, v{aT}
v_add_u32 v{aT+3}, -3072, v{aT}
s_waitcnt lgkmcnt(0)
""")
stamp()
a("s_barrier")
stamp()
GI = a.v(8)
a(f"buffer_load_dwordx4 {vr(GI,4)}, v{aG}, {SRD}, s60 offen sc1\nbuffer_load_dwordx4 {vr(GI+4,4)}, v{aG}, {SRD}, s61 offen sc1")
TF, UF, AC = a.v(32), a.v(32), a.v(32)


def read_T(mu):
    o_ = 0 if mu & 1 else 128
    a(f"ds_read2_b32 {vr(TF+4*mu,2)}, v{aT+(mu>>1)} offset0:{o_} offset1:{o_+1}")
    a(f"ds_read2_b32 {vr(TF+4*mu+2,2)}, v{aT+(mu>>1)} offset0:{o_+2} offset1:{o_+3}")


def read_U(nu):
    a(f"ds_read_b128 {vr(UF+4*nu,4)}, v{aUf} offset:{512*nu}")


Lnc = a.label("noconv0")
a(f"s_cmp_ge_u32 {WV}, 4\ns_cbranch_scc1 {Lnc}")
for mu in range(7, 0, -1):
    read_T(mu)
for i in range(32):
    a(f"v_mov_b32 v{AC+i}, 0")
for k in range(1, 4):
    a(f"v_add_u32 v{aT+k}, -64, v{aT+k}")
a(f"{Lnc}:")
a(f"s_waitcnt vmcnt(1)\nds_write_b128 v{aUTw}, {vr(GI,4)} offset:{UT+512}")
a(f"s_waitcnt vmcnt(0)\nds_write_b128 v{aUTw}, {vr(GI+4,4)} offset:{UT+512+2048}")
nold0, nold1 = a.v(), a.v()
a(f"v_not_b32 v{nold0}, v{GI}\nv_not_b32 v{nold1}, v{GI+4}")
a("s_waitcnt lgkmcnt(0)\ns_barrier")
stamp()
Lnc = a.label("noconv1"); Lloop = a.label("rho")
a(f"s_cmp_ge_u32 {WV}, 4\ns_cbranch_scc1 {Lnc}")
for nu in range(8):
    read_U(nu)
read_T(0)
a(f"v_add_u32 v{aT}, -64, v{aT}\nv_add_u32 v{aUf}, -64, v{aUf}\ns_mov_b32 s38, 0")
a(f".p2align 6\n{Lloop}:")
queue = [("U", n) for n in range(8)] + [("T", 0), ("T", 0)]
for mu in range(7, -1, -1):
    for J in range(mu, 8):
        nu = J - mu
        last = max([i for i, x in enumerate(queue) if x in (("U", nu), ("T", mu))], default=-1)
        if last >= 0:
            a(f"s_waitcnt lgkmcnt({len(queue)-1-last})")
            queue = queue[last + 1:]
        mfma32(AC + 4 * J, TF + 4 * mu, UF + 4 * nu, AC + 4 * J)
        if mu == 0:
            read_U(nu); queue.append(("Un", nu))
    if mu == 4:
        a("s_waitcnt lgkmcnt(6)")
        queue = queue[-6:]
    read_T(mu); queue += [("Tn", mu), ("Tn", mu)]
    if mu & 1 == 0:
        a(f"v_add_u32 v{aT+(mu>>1)}, -64, v{aT+(mu>>1)}")
    if mu == 1:
        a("s_waitcnt lgkmcnt(4)")
        queue = queue[-4:]
    assert len(queue) <= 15
a(f"v_add_u32 v{aUf}, -64, v{aUf}\ns_add_u32 s38, s38, 1\ns_cmp_lt_u32 s38, 8\ns_cbranch_scc1 {Lloop}")
a("s_waitcnt lgkmcnt(0)")
for J in range(8):
    cvt(TF + 2 * J, AC + 4 * J, AC + 4 * J + 1)
    cvt(TF + 2 * J + 1, AC + 4 * J + 2, AC + 4 * J + 3)
    a(f"ds_write_b64 v{aYw}, {vr(TF+2*J,2)} offset:{YS+2048*J}")
a(f"{Lnc}:\ns_waitcnt lgkmcnt(0)")
stamp()
a("s_barrier")
a(f"ds_read_b128 {vr(GI,4)}, v{aYr} offset:{YS}\nds_read_b128 {vr(GI+4,4)}, v{aYr} offset:{YS+8192}")
a(f"s_waitcnt lgkmcnt(1)\nv_bfi_b32 v{GI}, 1, v{nold0}, v{GI}\nbuffer_store_dwordx4 {vr(GI,4)}, v{aG}, {SRD}, s60 offen sc1")
a(f"s_waitcnt lgkmcnt(0)\nv_bfi_b32 v{GI+4}, 1, v{nold1}, v{GI+4}\nbuffer_store_dwordx4 {vr(GI+4,4)}, v{aG}, {SRD}, s61 offen sc1")
stamp()
aOw, aOr, aO = a.v(), a.v(), a.v()
a(f"""
s_mul_i32 s38, {WV}, 3072
v_lshl_add_u32 v{t}, v{vGh}, 4, v{vC}
v_mul_u32_u24 v{aOw}, 48, v{t}
v_lshl_add_u32 v{aOw}, v{vG1}, 4, v{aOw}
v_add_u32 v{aOw}, s38, v{aOw}
v_lshl_add_u32 v{t}, v{vG}, 3, v{vR}
v_mul_u32_u24 v{aOr}, 48, v{t}
v_lshl_add_u32 v{aOr}, v{vCq}, 3, v{aOr}
v_add_u32 v{aOr}, s38, v{aOr}
s_lshl_b32 s38, {IDX}, 15
s_lshl_b32 s39, {WV}, 7
s_add_u32 s38, s38, s39
v_lshlrev_b32 v{aO}, 11, v{vC}
v_lshl_add_u32 v{aO}, v{vG}, 4, v{aO}
v_add_u32 v{aO}, s38, v{aO}
s_waitcnt vmcnt(0)
""")
if opt["pslp"]:
    a(f"s_sleep {opt['pslp']}")
stamp()
GY = UF
poll_toggle(GY, GY + 4, aUo, "s46", "s46", old0, old1, imm1=1024)
stamp()
for p in range(2):
    for i in range(4):
        y = GY + 4 * p + i; s = SK + 8 * p + 2 * i
        a(f"v_lshlrev_b32 v{t}, 16, v{y}\nv_and_b32 v{t2}, 0xffff0000, v{y}\nv_add_f32 v{t}, v{t}, v{s}\nv_add_f32 v{t2}, v{t2}, v{s+1}")
        cvt(y, t, t2)
    a(f"ds_write_b128 v{aOw}, {vr(GY+4*p,4)} offset:{OT+1536*p}")
for p in range(2):
    for hh in range(2):
        a(f"ds_read_b64_tr_b16 {vr(GI+4*p+2*hh,2)}, v{aOr} offset:{OT+1536*p+192*hh}")
for p in range(2):
    a(f"s_waitcnt lgkmcnt({2-2*p})\nglobal_store_dwordx4 v{aO}, {vr(GI+4*p,4)}, {S_OUT} offset:{64*p} sc1")
stamp()
if STAMP:
    a("s_waitcnt vmcnt(0)")
stamp()
a("s_branch L_fin")
a(f"{LH}:")
nstamp[0] = common_stamp
helper_start(WS_EA, vEp, vL, "L_conv", "L_codeend")
a(f"s_barrier\ns_waitcnt vmcnt(0)\nv_add_u32 v{vEp}, 1, v{vEp}\ns_barrier")
stamp()
helper_flags(WS_FLA, WS_EA, vEp)
a("s_barrier\ns_barrier")
stamp()
helper_poll(WS_FLA, WS_EA, vEp, vL)
stamp()
a("s_barrier\ns_barrier\ns_barrier")
a("L_fin:")
dump_stamps()
a("L_end:\ns_endpgm\nL_codeend:")

body = a.finish()
nv = max(a.vmax, vmax_spec)
nv = (nv + 7) // 8 * 8
hdr = open("concat_heads__ssm_conv_s4__spectral_gfnet__prompt.s.ref").read().split("\n")
out = [l for l in hdr if l.startswith(";") and "@launch" not in l and "Override" not in l and "grid=ceil" not in l]
out.append(f"; @launch grid=(256,1,1) block=(576,1,1) lds={LDS_BYTES}")
out.append('.amdgcn_target "amdgcn-amd-amdhsa--gfx950"\n.text')
out.append(f".globl {KN}\n.p2align 8\n.type {KN},@function\n{KN}:")
out += [("    " + l if not (l.endswith(":") or l.startswith(".")) else l) for l in body]
out.append('.section .rodata,"a"\n.p2align 6')
out.append(f""".amdhsa_kernel {KN}
  .amdhsa_next_free_vgpr {nv}
  .amdhsa_next_free_sgpr 102
  .amdhsa_accum_offset {nv}
  .amdhsa_group_segment_fixed_size 0
  .amdhsa_kernarg_size 120
  .amdhsa_user_sgpr_count 2
  .amdhsa_user_sgpr_kernarg_segment_ptr 1
  .amdhsa_system_sgpr_workgroup_id_x 1
.end_amdhsa_kernel""")
print("\n".join(out))
print(f"vgprs spec {vmax_spec} conv {a.vmax} -> {nv}; nops added {a.added}; lines {len(body)}", file=sys.stderr)
```

```python
import sys
sys.path.insert(0, "work")
from asmlib import Asm, vr, f2u

opt = dict(stamp=0, nt=1, fslp=8, pslp=2, prefetch=1, maxpoll=400000)
for arg in sys.argv[1:]:
    k, v = arg.split("=")
    opt[k] = int(v)
STAMP = opt["stamp"]
NT = " nt" if opt["nt"] else ""
KN = "concat_heads__ssm_conv_s4__spectral_gfnet__prompt_kernel"

WS_X1, WS_U = 0x000000, 0x200000
WS_FLB, WS_FLA = 0x400000, 0x404000
WS_EB, WS_EA = 0x408000, 0x408080
WS_STAMP = 0x600000
WS_SIZE = 0x800000
OOB = 0x40000000
XT, T1, S1 = 0, 16384, 1072
XS, WSL, ZT, T2, S2, ZS = 0, 18944, 0, 23040, 1216, 43712
UT0, YS, UT, UTS, KC, KCS, EB, RT, OT = 0, 0, 16384, 4640, 34944, 3088, 51328, 51328, 51328
LDS_BYTES = 88192

S_U, S_ARE, S_AIM, S_BRE, S_BIM, S_CRE, S_CIM, S_LDT = [f"s[{4+2*i}:{5+2*i}]" for i in range(8)]
S_DSK, S_X, S_WR, S_WI, S_OUT = "s[20:21]", "s[22:23]", "s[24:25]", "s[26:27]", "s[28:29]"
SRD = "s[32:35]"
IDX, WV = "s36", "s37"

a = Asm()
nstamp = [0]


def stamp():
    if STAMP:
        i = nstamp[0]
        nstamp[0] += 1
        assert i < 16
        a(f"s_memrealtime s[{64+2*i}:{65+2*i}]\ns_waitcnt lgkmcnt(0)")


def dump_stamps():
    if STAMP == 2:
        v0_, v1_ = a.v(), a.v()
        Lb, Le = a.label("dbgb"), a.label("dbge")
        a(f"s_mov_b64 exec, 1\ns_mov_b32 s40, s30\ns_mov_b32 s41, s31\ns_mov_b32 s42, 256\ns_mov_b32 s43, 0x20000\nv_mov_b32 v{v0_}, 0")
        a(f"s_not_b32 s38, s64\nv_mov_b32 v{v1_}, s38\nbuffer_atomic_umax v{v1_}, v{v0_}, s[40:43], 0 offen sc1")
        a(f"s_cmp_eq_u32 {WV}, 8\ns_cbranch_scc1 {Le}\ns_cmp_ge_u32 s2, 128\ns_cbranch_scc0 {Lb}")
        for j, i in enumerate((0, 2, 4, 6, 7, 9, 11, 13)):
            a(f"v_mov_b32 v{v1_}, s{64+2*i}\nbuffer_atomic_umax v{v1_}, v{v0_}, s[40:43], 0 offen offset:{32+4*j} sc1")
        a(f"s_branch {Le}\n{Lb}:")
        for j, i in enumerate((2, 3, 5, 6, 7, 9, 12)):
            a(f"v_mov_b32 v{v1_}, s{64+2*i}\nbuffer_atomic_umax v{v1_}, v{v0_}, s[40:43], 0 offen offset:{4+4*j} sc1")
        a(f"{Le}:")
        a.free(v0_); a.free(v1_)
    elif STAMP:
        v0_, v1_ = a.v(), a.v()
        a(f"s_mov_b64 exec, 1\ns_lshl_b32 s38, s2, 4\ns_add_u32 s38, s38, {WV}\ns_lshl_b32 s38, s38, 6\ns_add_u32 s38, s38, {WS_STAMP}\nv_mov_b32 v{v0_}, s38")
        for i in range(16):
            a(f"v_mov_b32 v{v1_}, s{64+2*i}\nbuffer_store_dword v{v1_}, v{v0_}, {SRD}, 0 offen offset:{4*i}")
        a.free(v0_); a.free(v1_)


def mfma32(d, A, B, c):
    a(f"v_mfma_f32_16x16x32_bf16 {vr(d,4)}, {vr(A,4)}, {vr(B,4)}, {vr(c,4) if c is not None else 0}")


def mfma16(d, A, B):
    a(f"v_mfma_f32_16x16x16_bf16 {vr(d,4)}, {vr(A,2)}, {vr(B,2)}, 0")


def cvt(d, x, y, nx=False, ny=False):
    a(f"v_cvt_pk_bf16_f32 v{d}, {'-' if nx else ''}v{x}, {'-' if ny else ''}v{y}")


def cmul(dr, di, x, y, c, s, conj):
    a(f"v_mul_f32 v{dr}, v{x}, v{c}\nv_mul_f32 v{di}, v{y}, v{c}")
    if conj:
        a(f"v_fmac_f32 v{dr}, v{y}, v{s}\nv_fma_f32 v{di}, -v{x}, v{s}, v{di}")
    else:
        a(f"v_fma_f32 v{dr}, -v{y}, v{s}, v{dr}\nv_fmac_f32 v{di}, v{x}, v{s}")


def sincos_chain(n, a0, step, cos_dst, sin_dst):
    for i in range(n):
        a(f"v_cos_f32 v{cos_dst+i}, v{a0}\nv_sin_f32 v{sin_dst+i}, v{a0}")
        if i < n - 1:
            a(f"v_add_f32 v{a0}, v{a0}, v{step}")


def poll_toggle(g0, g1, vaddr, off0, off1, old0, old1, imm1=None):
    L, Le = a.label("poll"), a.label("polled")
    t0, t1 = a.v(), a.v()
    a(f"s_mov_b32 s38, 0\n{L}:")
    a(f"buffer_load_dwordx4 {vr(g0,4)}, v{vaddr}, {SRD}, {off0} offen sc1")
    a(f"buffer_load_dwordx4 {vr(g1,4)}, v{vaddr}, {SRD}, {off1} offen{'' if imm1 is None else f' offset:{imm1}'} sc1")
    a(f"s_add_u32 s38, s38, 1\ns_waitcnt vmcnt(0)")
    a(f"v_xor_b32 v{t0}, v{g0}, v{old0}\nv_xor_b32 v{t1}, v{g1}, v{old1}\nv_and_b32 v{t0}, v{t0}, v{t1}\nv_and_b32 v{t0}, 1, v{t0}")
    a(f"v_cmp_eq_u32 vcc, 0, v{t0}\ns_cbranch_vccz {Le}\ns_mov_b64 exec, vcc")
    a(f"s_cmp_lt_u32 s38, {opt['maxpoll']}\ns_cbranch_scc1 {L}\n{Le}:\ns_mov_b64 exec, -1")
    a.free(t0); a.free(t1)


def helper_flags(fl, ep, vep):
    t = a.v()
    a(f"s_lshl_b32 s38, {IDX}, 7\ns_add_u32 s38, s38, {fl}\nv_mov_b32 v{t}, s38\ns_mov_b64 exec, 1")
    a(f"buffer_store_dword v{vep}, v{t}, {SRD}, 0 offen sc1\ns_mov_b64 exec, -1")
    a.free(t)


def helper_poll(fl, ep, vep, vL):
    L, Le, Ls = a.label("fpoll"), a.label("fpolled"), a.label("noepoch")
    t, f0, f1 = a.v(), a.v(), a.v()
    a(f"v_lshlrev_b32 v{t}, 7, v{vL}\ns_mov_b32 s39, {fl}\ns_mov_b32 s40, {fl+8192}\ns_mov_b32 s38, 0")
    if opt["fslp"]:
        a(f"s_sleep {opt['fslp']}")
    a(f"{L}:\nbuffer_load_dword v{f0}, v{t}, {SRD}, s39 offen sc1\nbuffer_load_dword v{f1}, v{t}, {SRD}, s40 offen sc1")
    a(f"s_add_u32 s38, s38, 1\ns_waitcnt vmcnt(0)\nv_xor_b32 v{f0}, v{f0}, v{vep}\nv_xor_b32 v{f1}, v{f1}, v{vep}\nv_or_b32 v{f0}, v{f0}, v{f1}")
    a(f"v_cmp_ne_u32 vcc, 0, v{f0}\ns_cbranch_vccz {Le}\ns_mov_b64 exec, vcc")
    a(f"s_cmp_lt_u32 s38, {opt['maxpoll']}\ns_cbranch_scc1 {L}\n{Le}:\ns_mov_b64 exec, 1")
    a(f"s_cmp_lg_u32 {IDX}, 0\ns_cbranch_scc1 {Ls}\nv_mov_b32 v{t}, {ep}\nbuffer_store_dword v{vep}, v{t}, {SRD}, 0 offen sc1\n{Ls}:\ns_mov_b64 exec, -1")
    a.free(t); a.free(f0); a.free(f1)


def helper_start(ep, vep, vL, first, last):
    t, j = a.v(), vep + 1
    a(f"v_mov_b32 v{t}, {ep}\nbuffer_load_dword v{vep}, v{t}, {SRD}, 0 offen sc1")
    if opt["prefetch"]:
        Lp = a.label("pc")
        a(f"s_getpc_b64 s[40:41]\n{Lp}:\ns_sub_u32 s40, s40, {Lp}-{first}\ns_subb_u32 s41, s41, 0\ns_mov_b32 s42, {last}-{first}\ns_mov_b32 s43, 0x20000")
        a(f"v_lshlrev_b32 v{t}, 7, v{vL}\ns_mov_b32 s38, 8192")
        a(f"buffer_load_dword v{j}, v{t}, s[40:43], 0 offen\nbuffer_load_dword v{j}, v{t}, s[40:43], s38 offen")
    a.free(t)


vL, vC, vG = a.v(), a.v(), a.v()
vt0, vt1 = a.v(), a.v()
a(f"""
s_load_dwordx16 s[4:19], s[0:1], 0
s_load_dwordx8 s[20:27], s[0:1], 64
s_load_dwordx4 s[28:31], s[0:1], 96
s_load_dwordx2 s[32:33], s[0:1], 112
s_cmp_ge_u32 s2, 256
s_cbranch_scc1 L_end
v_lshrrev_b32 v{vt0}, 6, v0
v_and_b32 v{vL}, 63, v0
s_and_b32 s38, s2, 7
v_readfirstlane_b32 {WV}, v{vt0}
s_bfe_u32 {IDX}, s2, 0x40003
s_lshl_b32 s38, s38, 4
s_add_u32 {IDX}, {IDX}, s38
s_lshl_b32 s39, {IDX}, 14
s_lshl_b32 s40, {IDX}, 10
s_cmp_ge_u32 s2, 128
s_cselect_b32 s39, s39, s40
s_cselect_b32 s40, 1, 0x80
s_lshl_b32 s40, s40, 10
s_lshl_b32 s38, {WV}, 7
s_add_u32 s39, s39, s38
s_lshl_b32 s41, {WV}, 11
s_mov_b32 m0, s41
v_lshrrev_b32 v{vt0}, 2, v{vL}
v_and_b32 v{vt0}, 4, v{vt0}
v_and_b32 v{vt1}, 7, v{vL}
v_xor_b32 v{vt0}, v{vt0}, v{vt1}
v_lshl_add_u32 v{vt0}, v{vt0}, 4, s39
v_lshrrev_b32 v{vt1}, 3, v{vL}
v_mad_u32_u24 v{vt0}, v{vt1}, s40, v{vt0}
s_lshl_b32 s40, s40, 3
s_sub_u32 s40, s40, 1024
v_xor_b32 v{vt1}, 32, v{vt0}
v_add_u32 v{vt1}, s40, v{vt1}
s_mov_b32 s34, {WS_SIZE}
s_mov_b32 s35, 0x20000
v_and_b32 v{vC}, 15, v{vL}
v_lshrrev_b32 v{vG}, 4, v{vL}
s_cmp_ge_u32 s2, 128
s_waitcnt lgkmcnt(0)
s_cselect_b64 s[42:43], {S_U}, {S_X}
s_cmp_eq_u32 {WV}, 8
s_cbranch_scc1 L_noload
global_load_lds_dwordx4 v{vt0}, s[42:43]{NT}
global_load_lds_dwordx4 v{vt1}, s[42:43] offset:1024{NT}
L_noload:
""")
stamp()
a("s_cmp_ge_u32 s2, 128\ns_cbranch_scc1 L_conv")
a.free(vt0); a.free(vt1)
common_free = set(a.vfree)
common_stamp = nstamp[0]

a("L_spec:")
vEp = a.v(2)
Lh = a.label("bh0")
a(f"s_cmp_lg_u32 {WV}, 8\ns_cbranch_scc1 {Lh}")
helper_start(WS_EB, vEp, vL, "L_spec", "L_conv")
z = a.v(4, 2); t = a.v()
a(f"v_mov_b32 v{z}, 0\nv_mov_b32 v{z+1}, 0\nv_mov_b32 v{z+2}, 0\nv_mov_b32 v{z+3}, 0\nv_lshlrev_b32 v{t}, 4, v{vL}")
a(f"ds_write_b128 v{t}, {vr(z,4)} offset:{T1+16*S1}\nds_write_b128 v{t}, {vr(z,4)} offset:{T1+16*S1+48}")
a.free(z, 4); a.free(t)
a(f"{Lh}:")
a(f"""
s_lshl_b32 s44, {WV}, 1
s_add_u32 s45, s44, 1
s_lshl_b32 s46, {WV}, 11
s_and_b32 s38, {WV}, 7
s_lshr_b32 s39, {WV}, 3
s_lshl_b32 s40, s39, 10
s_cmp_eq_u32 s38, 0
s_cselect_b32 s44, s39, s44
s_cselect_b32 s45, 16, s45
s_cselect_b32 s46, s40, s46
s_cselect_b32 s48, 1, 0
s_cselect_b32 s47, {OOB>>10}, 1
s_lshl_b32 s47, s47, 10
s_mov_b32 s49, 0
s_mov_b32 s50, s48
s_lshl_b32 s38, {IDX}, 14
s_add_u32 s46, s46, s38
s_add_u32 s47, s47, s46
""")
vR, vCq = a.v(), a.v()
fC, fG = a.v(), a.v()
a(f"v_bfe_u32 v{vR}, v{vL}, 2, 2\nv_and_b32 v{vCq}, 3, v{vL}\nv_cvt_f32_u32 v{fC}, v{vC}\nv_cvt_f32_u32 v{fG}, v{vG}")
vG1, vGh = a.v(), a.v()
a(f"v_and_b32 v{vG1}, 1, v{vG}\nv_lshrrev_b32 v{vGh}, 1, v{vG}")
fG1x8, fGhq = a.v(), a.v()
a(f"v_cvt_f32_u32 v{fG1x8}, v{vG1}\nv_cvt_f32_u32 v{fGhq}, v{vGh}\nv_mul_f32 v{fG1x8}, 0x41000000, v{fG1x8}\nv_mul_f32 v{fGhq}, 0x3e800000, v{fGhq}")

tc = a.v(16); ts = tc + 8
ang, stp = a.v(), a.v()
F1 = a.v(2)
a(f"""
v_lshrrev_b32 v{ang}, 1, v{vC}
v_and_b32 v{stp}, 1, v{vC}
v_cmp_eq_u32 vcc, 1, v{vC}
v_cvt_f32_u32 v{tc}, v{stp}
v_cndmask_b32 v{ang}, v{ang}, 8, vcc
v_mul_f32 v{tc}, 0x3e800000, v{tc}
v_cvt_f32_u32 v{stp}, v{ang}
v_cndmask_b32 v{tc}, v{tc}, 0, vcc
v_mul_f32 v{stp}, 0x3d800000, v{stp}
v_mul_f32 v{ang}, v{fG}, v{stp}
v_fma_f32 v{ang}, v{ang}, 4.0, v{tc}
""")
for i in range(4):
    a(f"v_cos_f32 v{tc+i}, v{ang}")
    if i < 3:
        a(f"v_add_f32 v{ang}, v{ang}, v{stp}")
cvt(F1, tc, tc + 1); cvt(F1 + 1, tc + 2, tc + 3)
B2re, B2im = a.v(4), a.v(4)
a(f"v_mul_f32 v{stp}, 0x3d800000, v{fC}\nv_fma_f32 v{ang}, v{fG1x8}, v{stp}, -v{fGhq}")
sincos_chain(8, ang, stp, tc, ts)
for i in range(4):
    cvt(B2re + i, tc + 2 * i, tc + 2 * i + 1)
    cvt(B2im + i, ts + 2 * i, ts + 2 * i + 1, True, True)
TW1c, TW1s = a.v(8), a.v(8)
ang2 = a.v()
a(f"v_mul_f32 v{stp}, 0x3b000000, v{fC}\nv_mul_f32 v{ang}, v{fG}, v{stp}\nv_mul_f32 v{ang}, 4.0, v{ang}\nv_fmamk_f32 v{ang2}, v{stp}, 0x41800000, v{ang}")
sincos_chain(4, ang, stp, TW1c, TW1s)
sincos_chain(4, ang2, stp, TW1c + 4, TW1s + 4)
COS = [a.v(4), a.v(4)]; SIN = [a.v(4), a.v(4)]; NSIN = [a.v(4), a.v(4)]
a(f"v_mul_f32 v{stp}, 0x3d000000, v{fC}\nv_mul_f32 v{ang}, v{fG}, v{stp}\nv_mul_f32 v{ang}, 4.0, v{ang}\nv_fmamk_f32 v{ang2}, v{stp}, 0x41800000, v{ang}")
sincos_chain(4, ang, stp, tc, ts)
sincos_chain(4, ang2, stp, tc + 4, ts + 4)
for i in range(4):
    cvt(COS[0] + i, tc + 2 * i, tc + 2 * i + 1)
    cvt(SIN[0] + i, ts + 2 * i, ts + 2 * i + 1)
    cvt(NSIN[0] + i, ts + 2 * i, ts + 2 * i + 1, True, True)
    cvt(COS[1] + i, tc + 2 * i, tc + 2 * i + 1, False, True)
    cvt(SIN[1] + i, ts + 2 * i, ts + 2 * i + 1, False, True)
    cvt(NSIN[1] + i, ts + 2 * i, ts + 2 * i + 1, True, False)

aX0, aX1, aT1w, aT1r, aOut = a.v(), a.v(), a.v(), a.v(), a.v()
t = a.v()
a(f"""
v_lshl_add_u32 v{t}, v{vG}, 2, v{vR}
v_lshlrev_b32 v{aX0}, 1, v{vR}
v_and_b32 v{aX0}, 4, v{aX0}
v_lshl_add_u32 v{aX0}, v{vGh}, 1, v{aX0}
v_xor_b32 v{aX0}, v{aX0}, v{vCq}
v_lshlrev_b32 v{aX0}, 4, v{aX0}
v_lshl_add_u32 v{aX0}, v{t}, 7, v{aX0}
v_add_u32 v{aX0}, s41, v{aX0}
v_xor_b32 v{aX1}, 64, v{aX0}
s_lshl_b32 s38, {WV}, 7
s_lshr_b32 s39, {WV}, 2
s_lshl_b32 s39, s39, 5
s_add_u32 s38, s38, s39
v_mul_u32_u24 v{aT1w}, {S1}, v{vC}
v_lshl_add_u32 v{aT1w}, v{vG}, 4, v{aT1w}
v_add_u32 v{aT1w}, s38, v{aT1w}
s_mul_i32 s38, s44, {S1}
s_mul_i32 s39, s45, {S1}
s_sub_u32 s39, s39, s38
v_mul_u32_u24 v{aT1r}, 544, v{vG1}
v_lshl_add_u32 v{aT1r}, v{vR}, 6, v{aT1r}
v_lshl_add_u32 v{aT1r}, v{vCq}, 3, v{aT1r}
v_mad_u32_u24 v{aT1r}, v{vGh}, s39, v{aT1r}
v_add_u32 v{aT1r}, s38, v{aT1r}
v_lshlrev_b32 v{aOut}, 6, v{vC}
v_lshl_add_u32 v{aOut}, v{vG}, 4, v{aOut}
""")
a.free(t)
stamp()
L1 = a.label("bs1")
a(f"s_cmp_eq_u32 {WV}, 8\ns_cbranch_scc1 {L1}\ns_waitcnt vmcnt(0)")
A = a.v(8); D = a.v(16); P4 = a.v(8)
for p in range(2):
    for e in range(2):
        a(f"ds_read_b64_tr_b16 {vr(A+4*p+2*e,2)}, v{aX1 if p else aX0} offset:{XT+8*e}")
for i in range(4):
    a(f"s_waitcnt lgkmcnt({3-i})")
    mfma16(D + 4 * i, A + 2 * i, F1)
for p in range(2):
    for i in range(4):
        cvt(P4 + 4 * p + i, D + 8 * p + 2 * i, D + 8 * p + 2 * i + 1)
    a(f"ds_write_b128 v{aT1w}, {vr(P4+4*p,4)} offset:{T1+64*p}")
a(f"{L1}:\ns_waitcnt lgkmcnt(0)\ns_barrier")
stamp()
for tau in range(2):
    for h in range(2):
        a(f"ds_read_b64_tr_b16 {vr(A+4*tau+2*h,2)}, v{aT1r} offset:{T1+256*h+32*tau}")
for tau in range(2):
    a(f"s_waitcnt lgkmcnt({2-2*tau})")
    mfma32(D + 8 * tau, A + 4 * tau, B2re, None)
    mfma32(D + 8 * tau + 4, A + 4 * tau, B2im, None)
tmp = a.v(4)
A3 = P4
for tau in range(2):
    for pr in range(2):
        for i in range(2):
            r = 2 * pr + i
            cmul(tmp + i, tmp + 2 + i, D + 8 * tau + r, D + 8 * tau + 4 + r, TW1c + 4 * tau + r, TW1s + 4 * tau + r, True)
        cvt(A3 + 2 * tau + pr, tmp, tmp + 1)
        cvt(A3 + 4 + 2 * tau + pr, tmp + 2, tmp + 3)
D3 = a.v(16)
for tt in range(2):
    mfma32(D3 + 8 * tt, A3, COS[tt], None)
    mfma32(D3 + 8 * tt + 4, A3, NSIN[tt], None)
for tt in range(2):
    mfma32(D3 + 8 * tt, A3 + 4, SIN[tt], D3 + 8 * tt)
    mfma32(D3 + 8 * tt + 4, A3 + 4, COS[tt], D3 + 8 * tt + 4)
a(f"""
s_lshr_b32 s38, {IDX}, 4
s_and_b32 s39, {IDX}, 7
s_bfe_u32 s40, {IDX}, 0x10003
s_lshl_b32 s51, s40, 3
s_cmp_eq_u32 s38, 0
s_cselect_b32 s51, s51, s38
s_cselect_b32 s40, 0, s40
s_mul_i32 s52, s51, 514
s_lshl_b32 s42, s39, 6
s_add_u32 s52, s52, s42
s_sub_u32 s43, {2048*514 + 2*(256-31)}, s52
s_lshl_b32 s55, {WV}, 3
s_sub_u32 s42, 56, s55
s_cmp_eq_u32 s40, 0
s_cselect_b32 s52, s52, s43
s_cselect_b32 s53, 1, -1
s_cselect_b32 s54, 0, 0x80008000
s_cselect_b32 s55, s55, s42
s_cselect_b32 s42, 0, 0x06060000
s_mul_i32 s53, s53, 8224
s_xor_b32 s56, s42, 0x01000c0c
s_xor_b32 s57, s42, 0x03020c0c
s_xor_b32 s58, s42, 0x05040c0c
s_xor_b32 s59, s42, 0x07060c0c
""")
a(f"v_cndmask_b32 v{D3+4}, v{D3+4}, v{D3+8}, s[48:49]")
GX = A
for tt in range(2):
    for i in range(4):
        cvt(GX + 4 * tt + i, D3 + 8 * tt + 2 * i, D3 + 8 * tt + 2 * i + 1)
    a(f"buffer_store_dwordx4 {vr(GX+4*tt,4)}, v{aOut}, {SRD}, s{46+tt} offen sc1")
old0, old1 = a.v(), a.v()
a(f"v_mov_b32 v{old0}, v{GX}\nv_or_b32 v{old1}, s50, v{GX+4}")
for r_, n_ in ((D, 16), (D3, 16), (P4, 8), (tmp, 4), (F1, 2), (B2re, 4), (B2im, 4), (TW1c, 8), (TW1s, 8), (aX0, 1), (aX1, 1), (aT1w, 1), (aT1r, 1)):
    a.free(r_, n_)
stamp()

LH = a.label("bhelp"); LP3 = a.label("bp3")
a(f"s_cmp_eq_u32 {WV}, 8\ns_cbranch_scc1 {LH}")
WRAW = a.v(8)
aW = a.v(); t = a.v()
a(f"v_and_b32 v{t}, 3, v0\nv_lshl_add_u32 v{t}, v{t}, 4, s52\nv_lshrrev_b32 v{aW}, 2, v0\nv_mad_i32_i24 v{t}, v{aW}, s53, v{t}")
a(f"global_load_dwordx4 {vr(WRAW,4)}, v{t}, {S_WR}{NT}\nglobal_load_dwordx4 {vr(WRAW+4,4)}, v{t}, {S_WI}{NT}")
a(f"v_mul_u32_u24 v{aW}, 80, v{aW}\nv_and_b32 v{t}, 3, v0\nv_lshl_add_u32 v{aW}, v{t}, 4, v{aW}")
a.free(t)
a.free(A, 8)
fF = a.v()
a(f"v_cvt_f32_u32 v{ang}, s51\nv_fmamk_f32 v{fF}, v{fC}, 0x41800000, v{ang}")
B1re, B1im = a.v(4), a.v(4)
a(f"v_mul_f32 v{stp}, 0x3b800000, v{fF}\nv_fma_f32 v{ang2}, v{fG1x8}, v{stp}, -v{fGhq}")
sincos_chain(8, ang2, stp, tc, ts)
for i in range(4):
    cvt(B1re + i, tc + 2 * i, tc + 2 * i + 1)
    cvt(B1im + i, ts + 2 * i, ts + 2 * i + 1, True, True)
TWa = a.v(4)
a(f"v_mul_f32 v{stp}, 0x3a000000, v{fF}\nv_mul_f32 v{ang2}, v{fG}, v{stp}\nv_mul_f32 v{stp}, 4.0, v{stp}")
sincos_chain(2, ang2, stp, TWa, TWa + 2)
A2 = a.v(2)
fH, fO = a.v(), a.v()
a(f"v_lshrrev_b32 v{fH}, 1, v{vC}\nv_and_b32 v{fO}, 1, v{vC}\nv_cvt_f32_u32 v{fH}, v{fH}\nv_cvt_f32_u32 v{fO}, v{fO}")
for i in range(4):
    a(f"v_mul_f32 v{TWa+i}, {f2u(2.0**-19)}, v{TWa+i}")
a(f"v_mul_f32 v{stp}, 0x3e000000, v{fH}\nv_mul_f32 v{ang2}, 0x3e800000, v{fO}\nv_fmac_f32 v{ang2}, v{fG}, v{stp}\nv_mul_f32 v{tc+7}, 4.0, v{stp}")
sincos_chain(2, ang2, tc + 7, tc, ts)
B3re, B3im = a.v(4), a.v(4)
a(f"v_mul_f32 v{ang2}, v{fG}, v{stp}\nv_add_f32 v{ang2}, v{ang2}, v{ang2}")
cvt(A2, tc, ts); cvt(A2 + 1, tc + 1, ts + 1)
sincos_chain(2, ang2, stp, tc, ts)
m0_, m1_ = tc + 6, tc + 7
a(f"v_and_b32 v{m0_}, 1, v{vC}\nv_add_u32 v{m0_}, -1, v{m0_}\nv_not_b32 v{m1_}, v{m0_}")
for l in range(2):
    cvt(tc + 2 + l, tc + l, ts + l, False, True)
    cvt(ts + 2 + l, ts + l, tc + l)
for l in range(2):
    a(f"v_and_b32 v{B3re+l}, v{m0_}, v{tc+2+l}\nv_and_b32 v{B3re+2+l}, v{m1_}, v{tc+2+l}")
    a(f"v_and_b32 v{B3im+l}, v{m0_}, v{ts+2+l}\nv_and_b32 v{B3im+2+l}, v{m1_}, v{ts+2+l}")
TWbc, TWbs = a.v(4), a.v(4)
a(f"v_fmamk_f32 v{fF}, v{fG}, 0x42800000, v{ang}")
a(f"v_mul_f32 v{stp}, 0x3a000000, v{fH}\nv_mul_f32 v{ang2}, v{fF}, v{stp}\nv_mul_f32 v{stp}, 0x41800000, v{stp}")
sincos_chain(4, ang2, stp, TWbc, TWbs)
B4 = a.v(6)
a(f"v_mul_f32 v{stp}, 0x3b800000, v{fC}\nv_mul_f32 v{ang2}, v{fF}, v{stp}\nv_mul_f32 v{stp}, 0x41800000, v{stp}")
sincos_chain(4, ang2, stp, tc, ts)
for i in range(2):
    cvt(B4 + i, ts + 2 * i, ts + 2 * i + 1)
    cvt(B4 + 2 + i, tc + 2 * i, tc + 2 * i + 1)
    cvt(B4 + 4 + i, ts + 2 * i, ts + 2 * i + 1, True, True)
a.free(fF); a.free(fH); a.free(fO)
aG, aXSw, aXSr, aWr, aZw, aZr = [a.v() for _ in range(6)]
t, t2 = a.v(), a.v()
a(f"""
v_lshrrev_b32 v{t}, 3, v0
v_and_b32 v{t2}, 7, v0
v_lshlrev_b32 v{aG}, 14, v{t}
v_lshl_add_u32 v{aG}, v{t2}, 4, v{aG}
v_mul_u32_u24 v{aXSw}, 144, v{t}
v_lshl_add_u32 v{aXSw}, v{t2}, 4, v{aXSw}
v_xor_b32 v{t2}, {WV}, v{t2}
v_lshlrev_b32 v{aZr}, 7, v{t}
v_lshl_add_u32 v{aZr}, v{t2}, 4, v{aZr}
v_lshrrev_b32 v{t}, 4, v{t}
v_lshl_add_u32 v{aXSw}, v{t}, 6, v{aXSw}
v_mul_u32_u24 v{aXSr}, {144*64+256}, v{vG1}
v_mul_u32_u24 v{t}, {144*8}, v{vR}
v_mul_u32_u24 v{t2}, 144, v{vCq}
v_add3_u32 v{aXSr}, v{aXSr}, v{t}, v{t2}
v_lshrrev_b32 v{t}, 1, v{vR}
v_lshl_add_u32 v{aXSr}, v{t}, 6, v{aXSr}
v_lshl_add_u32 v{aXSr}, v{vGh}, 3, v{aXSr}
s_lshl_b32 s38, {WV}, 4
v_add_u32 v{aXSr}, s38, v{aXSr}
v_lshl_add_u32 v{aWr}, v{vG}, 5, v{vC}
v_mul_u32_u24 v{aWr}, 80, v{aWr}
v_add_u32 v{aWr}, s55, v{aWr}
v_and_b32 v{t}, 7, v{vC}
v_xor_b32 v{t}, {WV}, v{t}
v_lshlrev_b32 v{aZw}, 10, v{vC}
v_lshl_add_u32 v{aZw}, v{vG}, 8, v{aZw}
v_lshl_add_u32 v{aZw}, v{t}, 4, v{aZw}
s_lshl_b32 s60, {IDX}, 7
s_add_u32 s61, s60, 0x100000
""")
SP = tc
for r_ in (fG1x8, fGhq, vG1, vGh, ang, stp, ang2):
    a.free(r_)
Lns, Lsd = a.label("nospec"), a.label("specdone")
a(f"s_and_b32 s38, {IDX}, 7\ns_or_b32 s62, s38, {WV}\ns_cmp_lg_u32 s62, 0\ns_cbranch_scc1 {Lns}")
for b in range(2):
    a(f"v_lshl_add_u32 v{t}, v{vG}, 5, v{vC}\nv_lshlrev_b32 v{t}, 4, v{t}\nv_add_u32 v{t}, s51, v{t}")
    if b:
        a(f"v_add_u32 v{t}, 256, v{t}")
    a(f"v_sub_u32 v{t2}, 2048, v{t}\nv_and_b32 v{t2}, 2047, v{t2}\nv_mul_u32_u24 v{t}, 514, v{t}\nv_mul_u32_u24 v{t2}, 514, v{t2}")
    for j, (ad, off) in enumerate(((t, 0), (t2, 0), (t, 512), (t2, 512))):
        a(f"global_load_ushort v{SP+8*b+2*j}, v{ad}, {S_WR} offset:{off}\nglobal_load_ushort v{SP+8*b+2*j+1}, v{ad}, {S_WI} offset:{off}")
a(f"s_waitcnt vmcnt(18)\ns_branch {Lsd}\n{Lns}:\ns_waitcnt vmcnt(2)\n{Lsd}:")
a.free(t); a.free(t2)
stamp()
a("s_barrier")
a("s_barrier")
stamp()
GI = a.v(8)
a(f"buffer_load_dwordx4 {vr(GI,4)}, v{aG}, {SRD}, s60 offen sc1\nbuffer_load_dwordx4 {vr(GI+4,4)}, v{aG}, {SRD}, s61 offen sc1")
a("s_waitcnt vmcnt(2)")
for i in range(4):
    a(f"v_xor_b32 v{WRAW+4+i}, s54, v{WRAW+4+i}")
a(f"ds_write_b128 v{aW}, {vr(WRAW,4)} offset:{WSL}\nds_write_b128 v{aW}, {vr(WRAW+4,4)} offset:{WSL+10240}")
Lns2 = a.label("nospec")
MA = a.v(4)
a(f"s_cmp_lg_u32 s62, 0\ns_cbranch_scc1 {Lns2}")
a(f"""
s_lshr_b32 s38, {IDX}, 4
s_cmp_eq_u32 s54, 0
s_cselect_b32 s39, 0.5, 0
s_cselect_b32 s40, 0, 0.5
s_cmp_eq_u32 s38, 0
s_cselect_b32 s39, {f2u(0.125)}, s39
s_cselect_b32 s40, {f2u(0.125)}, s40
s_cselect_b32 s42, {f2u(0.125)}, 0
""")
for i in range(16):
    a(f"v_lshlrev_b32 v{SP+i}, 16, v{SP+i}")
for b in range(2):
    s = SP + 8 * b
    a(f"v_add_f32 v{s}, v{s}, v{s+2}\nv_sub_f32 v{s+1}, v{s+1}, v{s+3}\nv_add_f32 v{s+4}, v{s+4}, v{s+6}\nv_sub_f32 v{s+5}, v{s+5}, v{s+7}")
    a(f"v_sub_f32 v{s+2}, v{s}, v{s+4}\nv_sub_f32 v{s+3}, v{s+1}, v{s+5}\nv_mul_f32 v{s+2}, s42, v{s+2}\nv_mul_f32 v{s+3}, s42, v{s+3}")
    a(f"v_mul_f32 v{s}, s39, v{s}\nv_mul_f32 v{s+1}, s39, v{s+1}\nv_fmac_f32 v{s}, s40, v{s+4}\nv_fmac_f32 v{s+1}, s40, v{s+5}")
a("s_lshr_b32 s38, s51, 3\ns_sub_u32 s38, 128, s38")
for b in range(2):
    s = SP + 8 * b
    a(f"v_lshl_add_u32 v{s+4}, v{vG}, 5, v{vC}\nv_sub_u32 v{s+4}, s38, v{s+4}")
    if b:
        a(f"v_add_u32 v{s+4}, -16, v{s+4}")
    a(f"v_and_b32 v{s+5}, 15, v{s+4}\nv_bfe_u32 v{s+6}, v{s+4}, 5, 2\nv_lshl_add_u32 v{s+5}, v{s+6}, 4, v{s+5}\nv_lshlrev_b32 v{MA+b}, 2, v{s+5}\nv_bfe_u32 v{MA+2+b}, v{s+4}, 4, 1")
a(f"{Lns2}:")
a("s_waitcnt vmcnt(0)")
a(f"ds_write_b128 v{aXSw}, {vr(GI,4)} offset:{XS}\nds_write_b128 v{aXSw}, {vr(GI+4,4)} offset:{XS+9472}")
nold0, nold1 = a.v(), a.v()
a(f"v_not_b32 v{nold0}, v{GI}\nv_not_b32 v{nold1}, v{GI+4}")
a("s_waitcnt lgkmcnt(0)\ns_barrier")
stamp()
A1 = GI
for tau in range(2):
    for h in range(2):
        a(f"ds_read_b64_tr_b16 {vr(A1+4*tau+2*h,2)}, v{aXSr} offset:{XS+4736*h+576*tau}")
for part in range(2):
    for b in range(2):
        a(f"ds_read_b64 {vr(WRAW+4*part+2*b,2)}, v{aWr} offset:{WSL+10240*part+1280*b}")
D = a.v(16); D2 = a.v(16); tmp = a.v(4); BQ = a.v(8)
for tau in range(2):
    a(f"s_waitcnt lgkmcnt({6-2*tau})")
    mfma32(D + 8 * tau, A1 + 4 * tau, B1re, None)
    mfma32(D + 8 * tau + 4, A1 + 4 * tau, B1im, None)
for q in range(4):
    for tau in range(2):
        cmul(tmp + 2 * tau, tmp + 2 * tau + 1, D + 8 * tau + q, D + 8 * tau + 4 + q, TWa + tau, TWa + 2 + tau, True)
    for tau in range(2):
        cvt(BQ + 2 * q + tau, tmp + 2 * tau, tmp + 2 * tau + 1)
    if q:
        mfma16(D2 + 4 * (q - 1), A2, BQ + 2 * (q - 1))
mfma16(D2 + 12, A2, BQ + 6)
WU = D
a("s_waitcnt lgkmcnt(0)")
for q in range(4):
    for b in range(2):
        for part in range(2):
            w_ = WRAW + 4 * part + 2 * b
            a(f"v_perm_b32 v{WU+4*q+2*b+part}, v{w_+1}, v{w_}, s{56+q}")
Lns3 = a.label("nospec")
MB = WRAW
a(f"s_cmp_lg_u32 s62, 0\ns_cbranch_scc1 {Lns3}")
for b in range(2):
    for i in range(4):
        a(f"ds_bpermute_b32 v{MB+4*b+i}, v{MA+b}, v{D2+i}")
for b in range(2):
    a(f"v_mov_b32 v{WU+2*b}, v{SP+8*b}\nv_mov_b32 v{WU+2*b+1}, v{SP+8*b+1}")
a(f"{Lns3}:")
AI = A1
for q in (1, 2, 3, 0):
    for b in range(2):
        cmul(tmp + 2 * b, tmp + 2 * b + 1, D2 + 4 * q + 2 * b, D2 + 4 * q + 2 * b + 1, WU + 4 * q + 2 * b, WU + 4 * q + 2 * b + 1, False)
    if q == 0:
        Lns4 = a.label("nospec")
        a(f"s_cmp_lg_u32 s62, 0\ns_cbranch_scc1 {Lns4}\ns_waitcnt lgkmcnt(0)")
        for b in range(2):
            s = SP + 8 * b
            a(f"v_cmp_eq_u32 vcc, 1, v{MA+2+b}\nv_cndmask_b32 v{MB+4*b}, v{MB+4*b}, v{MB+4*b+2}, vcc\nv_cndmask_b32 v{MB+4*b+1}, v{MB+4*b+1}, v{MB+4*b+3}, vcc")
            a(f"v_fmac_f32 v{tmp+2*b}, v{MB+4*b}, v{s+2}\nv_fmac_f32 v{tmp+2*b+1}, v{MB+4*b}, v{s+3}")
            a(f"v_fmac_f32 v{tmp+2*b}, v{MB+4*b+1}, v{s+3}\nv_fma_f32 v{tmp+2*b+1}, -v{MB+4*b+1}, v{s+2}, v{tmp+2*b+1}")
        a(f"{Lns4}:")
    for b in range(2):
        cvt(AI + 2 * q + b, tmp + 2 * b, tmp + 2 * b + 1)
    if q == 3:
        mfma32(D + 8, AI + 4, B3re, None)
        mfma32(D + 12, AI + 4, B3im, None)
mfma32(D2, AI, B3re, None)
mfma32(D2 + 4, AI, B3im, None)
A4 = BQ
D4 = (D2 + 8, D)
for p2, src in ((1, D + 8), (0, D2)):
    for pr in range(2):
        for i in range(2):
            r = 2 * pr + i
            cmul(tmp + i, tmp + 2 + i, src + r, src + 4 + r, TWbc + r, TWbs + r, False)
        cvt(A4 + 4 * p2 + pr, tmp, tmp + 1)
        cvt(A4 + 4 * p2 + 2 + pr, tmp + 2, tmp + 3)
    mfma32(D4[p2], A4 + 4 * p2, B4 + 2, None)
    mfma32(D4[p2] + 4, A4 + 4 * p2, B4, None)
GO = GI
for b in range(2):
    cvt(GO + 4 * b + 1, D4[1] + 2 * b, D4[1] + 2 * b + 1)
    cvt(GO + 4 * b + 3, D4[1] + 4 + 2 * b, D4[1] + 4 + 2 * b + 1)
for b in range(2):
    cvt(GO + 4 * b, D4[0] + 2 * b, D4[0] + 2 * b + 1)
    cvt(GO + 4 * b + 2, D4[0] + 4 + 2 * b, D4[0] + 4 + 2 * b + 1)
    a(f"ds_write_b128 v{aZw}, {vr(GO+4*b,4)} offset:{ZS+128*b}")
a("s_waitcnt lgkmcnt(0)\ns_barrier")
a(f"ds_read_b128 {vr(GO,4)}, v{aZr} offset:{ZS}\nds_read_b128 {vr(GO+4,4)}, v{aZr} offset:{ZS+8192}")
a(f"s_waitcnt lgkmcnt(1)\nv_bfi_b32 v{GO}, 1, v{nold0}, v{GO}\nbuffer_store_dwordx4 {vr(GO,4)}, v{aG}, {SRD}, s60 offen sc1")
a(f"s_waitcnt lgkmcnt(0)\nv_bfi_b32 v{GO+4}, 1, v{nold1}, v{GO+4}\nbuffer_store_dwordx4 {vr(GO+4,4)}, v{aG}, {SRD}, s61 offen sc1")
a(f"s_branch {LP3}")
for r_, n_ in ((D, 16), (D2, 16), (tmp, 4), (BQ, 8), (GI, 8), (WRAW, 8), (MA, 4), (B1re, 4), (B1im, 4), (TWa, 4), (A2, 2),
               (B3re, 4), (B3im, 4), (TWbc, 4), (TWbs, 4), (B4, 6), (aW, 1), (aG, 1), (aXSw, 1), (aXSr, 1), (aWr, 1), (aZw, 1), (aZr, 1), (nold0, 1), (nold1, 1)):
    a.free(r_, n_)
sv = nstamp[0]
nstamp[0] = sv - 3 if STAMP else 0
a(f"{LH}:\ns_waitcnt vmcnt(0)\nv_add_u32 v{vEp}, 1, v{vEp}")
stamp()
a("s_barrier")
helper_flags(WS_FLB, WS_EB, vEp)
helper_poll(WS_FLB, WS_EB, vEp, vL)
a("s_barrier")
stamp()
a("s_barrier")
stamp()
a("s_barrier")
a(f"{LP3}:")
stamp()
TW3c, TW3s = a.v(8), a.v(8)
ang, stp, ang2 = a.v(), a.v(), a.v()
a(f"v_mul_f32 v{stp}, 0x3b000000, v{fC}\nv_mul_f32 v{ang}, v{fG}, v{stp}\nv_mul_f32 v{ang}, 4.0, v{ang}")
sincos_chain(4, ang, stp, TW3c, TW3s)
a(f"v_add_f32 v{stp}, 0x3d000000, v{stp}\nv_mul_f32 v{ang}, v{fG}, v{stp}\nv_mul_f32 v{ang}, 4.0, v{ang}")
sincos_chain(4, ang, stp, TW3c + 4, TW3s + 4)
B6 = a.v(6)
a(f"v_mul_f32 v{stp}, 0x3d800000, v{fC}\nv_mul_f32 v{ang}, v{fG}, v{stp}\nv_mul_f32 v{ang}, 4.0, v{ang}")
sincos_chain(4, ang, stp, tc, ts)
for i in range(2):
    cvt(B6 + i, ts + 2 * i, ts + 2 * i + 1)
    cvt(B6 + 2 + i, tc + 2 * i, tc + 2 * i + 1)
    cvt(B6 + 4 + i, ts + 2 * i, ts + 2 * i + 1, True, True)
F2 = a.v(2)
a(f"""
v_mul_f32 v{ang}, v{fG}, v{stp}
v_add_f32 v{ang}, v{ang}, v{ang}
v_add_f32 v{ang2}, v{ang}, v{stp}
v_cos_f32 v{tc}, v{ang}
v_sin_f32 v{tc+1}, v{ang}
v_cos_f32 v{tc+2}, v{ang2}
v_sin_f32 v{tc+3}, v{ang2}
v_mul_f32 v{ang}, 0.5, v{fC}
v_cos_f32 v{tc+4}, v{ang}
v_cmp_eq_u32 vcc, 0, v{vG}
v_cndmask_b32 v{tc+1}, v{tc+1}, -v{tc+4}, vcc
""")
cvt(F2, tc, tc + 1, False, True); cvt(F2 + 1, tc + 2, tc + 3, False, True)
aZTw, aZTr, aT2a, aT2b, aT2r, aO = [a.v() for _ in range(6)]
t = a.v()
a(f"""
s_mul_i32 s38, {WV}, 2560
v_mul_u32_u24 v{aZTw}, 40, v{vC}
v_lshl_add_u32 v{aZTw}, v{vG}, 3, v{aZTw}
v_add_u32 v{aZTw}, s38, v{aZTw}
v_lshl_add_u32 v{t}, v{vG}, 2, v{vR}
v_mul_u32_u24 v{aZTr}, 40, v{t}
v_lshl_add_u32 v{aZTr}, v{vCq}, 3, v{aZTr}
v_add_u32 v{aZTr}, s38, v{aZTr}
s_mul_i32 s38, s44, {S2}
s_mul_i32 s39, s45, {S2}
v_mul_u32_u24 v{aT2a}, 72, v{vC}
v_lshl_add_u32 v{aT2a}, v{vG}, 3, v{aT2a}
v_add_u32 v{aT2b}, s39, v{aT2a}
v_add_u32 v{aT2a}, s38, v{aT2a}
s_mul_i32 s38, {WV}, 144
v_mul_u32_u24 v{aT2r}, {S2}, v{t}
v_lshl_add_u32 v{aT2r}, v{vCq}, 4, v{aT2r}
v_add_u32 v{aT2r}, s38, v{aT2r}
s_lshl_b32 s38, {IDX}, 11
s_lshl_b32 s39, {WV}, 7
s_add_u32 s38, s38, s39
s_add_u32 s38, s38, 1024
v_lshlrev_b32 v{aO}, 18, v{vC}
v_lshl_add_u32 v{aO}, v{vG}, 4, v{aO}
v_add_u32 v{aO}, s38, v{aO}
s_waitcnt vmcnt(0)
""")
if opt["pslp"]:
    a(f"s_sleep {opt['pslp']}")
stamp()
GZ = a.v(8)
poll_toggle(GZ, GZ + 4, aOut, "s46", "s47", old0, old1)
stamp()
a(f"v_and_b32 v{t}, 0xffff, v{GZ+2}\nv_cndmask_b32 v{GZ+4}, v{GZ+4}, v{t}, s[48:49]")
a.free(t)
for tt in range(2):
    for part in range(2):
        a(f"ds_write_b64 v{aZTw}, {vr(GZ+4*tt+2*part,2)} offset:{ZT+640*tt+1280*part}")
A5 = a.v(8)
for part in range(2):
    for h in range(2):
        a(f"ds_read_b64_tr_b16 {vr(A5+4*part+2*h,2)}, v{aZTr} offset:{ZT+640*h+1280*part}")
D = a.v(16); D3 = a.v(16); tmp = a.v(4)
a("s_waitcnt lgkmcnt(2)")
for tau in range(2):
    mfma32(D + 8 * tau, A5, COS[tau], None)
    mfma32(D + 8 * tau + 4, A5, SIN[tau], None)
a("s_waitcnt lgkmcnt(0)")
for tau in range(2):
    mfma32(D + 8 * tau, A5 + 4, NSIN[tau], D + 8 * tau)
    mfma32(D + 8 * tau + 4, A5 + 4, COS[tau], D + 8 * tau + 4)
A6 = GZ
for tau in range(2):
    for pr in range(2):
        for i in range(2):
            r = 2 * pr + i
            cmul(tmp + i, tmp + 2 + i, D + 8 * tau + r, D + 8 * tau + 4 + r, TW3c + 4 * tau + r, TW3s + 4 * tau + r, False)
        cvt(A6 + 4 * tau + pr, tmp, tmp + 1)
        cvt(A6 + 4 * tau + 2 + pr, tmp + 2, tmp + 3)
    mfma32(D3 + 8 * tau, A6 + 4 * tau, B6 + 2, None)
    mfma32(D3 + 8 * tau + 4, A6 + 4 * tau, B6, None)
for tau in range(2):
    for part in range(2):
        o_ = A5 + 4 * tau + 2 * part
        cvt(o_, D3 + 8 * tau + 4 * part, D3 + 8 * tau + 4 * part + 1)
        cvt(o_ + 1, D3 + 8 * tau + 4 * part + 2, D3 + 8 * tau + 4 * part + 3)
        a(f"ds_write_b64 v{aT2b if part else aT2a}, {vr(o_,2)} offset:{T2+32*tau}")
a(f"s_waitcnt lgkmcnt(0)\ns_barrier")
stamp()
a(f"s_cmp_eq_u32 {WV}, 8\ns_cbranch_scc1 L_fin")
for p in range(2):
    for e in range(2):
        a(f"ds_read_b64_tr_b16 {vr(A5+4*p+2*e,2)}, v{aT2r} offset:{T2+72*p+8*e}")
for i in range(4):
    a(f"s_waitcnt lgkmcnt({3-i})")
    mfma16(D + 4 * i, A5 + 2 * i, F2)
for p in range(2):
    for i in range(4):
        cvt(GZ + 4 * p + i, D + 8 * p + 2 * i, D + 8 * p + 2 * i + 1)
    a(f"global_store_dwordx4 v{aO}, {vr(GZ+4*p,4)}, {S_OUT} offset:{64*p} sc1")
stamp()
if STAMP:
    a("s_waitcnt vmcnt(0)")
stamp()
a("s_branch L_fin")
vmax_spec = a.vmax

a.vfree = set(common_free)
a.vmax = 0
nstamp[0] = common_stamp
a(".p2align 6\nL_conv:")
vEp = a.v(2)
LH = a.label("ahelp")
a(f"s_cmp_eq_u32 {WV}, 8\ns_cbranch_scc1 {LH}")
PR = a.v(7); DSK = a.v(2)
t, t2 = a.v(), a.v()
vG1, vGh = a.v(), a.v()
a(f"""
s_lshr_b32 s44, {WV}, 1
s_lshl_b32 s38, {IDX}, 2
s_add_u32 s38, s38, s44
s_lshl_b32 s39, s38, 8
s_and_b32 s40, {WV}, 1
s_lshl_b32 s40, s40, 7
s_add_u32 s39, s39, s40
v_lshl_add_u32 v{t}, v{vL}, 1, s39
s_lshl_b32 s38, s38, 1
v_mov_b32 v{t2}, s38
""")
a(f"global_load_ushort v{PR+6}, v{t2}, {S_LDT}")
for i, s in enumerate((S_ARE, S_AIM, S_BRE, S_BIM, S_CRE, S_CIM)):
    a(f"global_load_ushort v{PR+i}, v{t}, {s}{NT}")
a(f"""
v_and_b32 v{vG1}, 1, v{vG}
v_lshrrev_b32 v{vGh}, 1, v{vG}
s_lshl_b32 s38, {WV}, 7
v_lshl_add_u32 v{t}, v{vGh}, 4, v{vC}
v_lshl_add_u32 v{t}, v{t}, 1, s38
global_load_ushort v{DSK}, v{t}, {S_DSK}
global_load_ushort v{DSK+1}, v{t}, {S_DSK} offset:64
""")
z = a.v(4)
a(f"v_mov_b32 v{z}, 0\nv_mov_b32 v{z+1}, 0\nv_mov_b32 v{z+2}, 0\nv_mov_b32 v{z+3}, 0\nv_lshlrev_b32 v{t}, 4, v0")
a(f"ds_write_b128 v{t}, {vr(z,4)} offset:{KC}\nds_write_b128 v{t}, {vr(z,4)} offset:{KC+8192}")
a(f"v_lshrrev_b32 v{t}, 7, v0\nv_mul_u32_u24 v{t}, {UTS}, v{t}\nv_and_b32 v{t2}, 127, v0\nv_lshl_add_u32 v{t}, v{t2}, 2, v{t}\nds_write_b32 v{t}, v{z} offset:{UT}")
a.free(z, 4)
vR, vCq = a.v(), a.v()
aU0, aU1, aUo = a.v(), a.v(), a.v()
a(f"""
v_bfe_u32 v{vR}, v{vL}, 2, 2
v_and_b32 v{vCq}, 3, v{vL}
v_lshlrev_b32 v{t}, 1, v{vR}
v_and_b32 v{t}, 4, v{t}
v_lshl_add_u32 v{t}, v{vG1}, 1, v{t}
v_lshrrev_b32 v{t2}, 1, v{vCq}
v_lshl_add_u32 v{t2}, v{vGh}, 1, v{t2}
v_xor_b32 v{t}, v{t}, v{t2}
v_lshlrev_b32 v{aU0}, 4, v{t}
v_and_b32 v{t}, 1, v{vCq}
v_lshl_add_u32 v{aU0}, v{t}, 3, v{aU0}
v_lshl_add_u32 v{t}, v{vG1}, 3, v{vR}
v_lshl_add_u32 v{aU0}, v{t}, 7, v{aU0}
v_add_u32 v{aU0}, s41, v{aU0}
v_xor_b32 v{aU1}, 64, v{aU0}
v_lshrrev_b32 v{t}, 2, v{vC}
v_lshl_add_u32 v{t}, v{vGh}, 2, v{t}
v_lshlrev_b32 v{aUo}, 7, v{t}
v_lshl_add_u32 v{aUo}, v{vG1}, 6, v{aUo}
v_and_b32 v{t}, 3, v{vC}
v_lshl_add_u32 v{aUo}, v{t}, 4, v{aUo}
s_lshl_b32 s46, {IDX}, 14
s_add_u32 s46, s46, s41
s_add_u32 s46, s46, {WS_U}
""")
EX = a.v(9)
a(f"v_and_b32 v{t}, 255, v0\nv_lshlrev_b32 v{t}, 3, v{t}\nv_sub_u32 v{t}, 2047, v{t}\nv_lshrrev_b32 v{t2}, 8, v0\nv_mul_u32_u24 v{t2}, {2*KCS}, v{t2}")
t3 = a.v(2)
for e in range(9):
    a(f"""
v_cvt_f32_i32 v{t3}, v{t}
v_cmp_gt_i32 vcc, 128, v{t}
v_cvt_pk_bf16_f32 v{t3}, v{t3}, v{t3}
v_and_b32 v{t3}, 0xffff, v{t3}
v_add_u32 v{t3}, {128-(134<<7)}, v{t3}
v_cndmask_b32 v{t3}, v{t3}, v{t}, vcc
""")
    if e == 8:
        a(f"v_min_u32 v{t3}, 768, v{t3}")
    a(f"v_lshl_add_u32 v{EX+e}, v{t3}, 2, v{t2}")
    if e < 8:
        a(f"v_add_u32 v{t}, -1, v{t}")
a.free(t3, 2)
a("s_waitcnt lgkmcnt(0)\ns_barrier")
stamp()
UG = a.v(8)
a("s_waitcnt vmcnt(9)")
for p in range(2):
    for hh in range(2):
        a(f"ds_read_b64_tr_b16 {vr(UG+4*p+2*hh,2)}, v{aU1 if p else aU0} offset:{UT0+512*hh}")
for p in range(2):
    a(f"s_waitcnt lgkmcnt({2-2*p})\nbuffer_store_dwordx4 {vr(UG+4*p,4)}, v{aUo}, {SRD}, s46 offen offset:{1024*p} sc1")
a.free(aU0); a.free(aU1)
stamp()
aEw, aEr = a.v(), a.v()
a(f"""
s_mul_i32 s38, {WV}, 4608
s_add_u32 s38, s38, {EB}
v_lshl_add_u32 v{aEw}, v{vL}, 2, s38
v_mul_u32_u24 v{aEr}, 288, v{vC}
v_lshl_add_u32 v{aEr}, v{vG}, 4, v{aEr}
v_add_u32 v{aEr}, s38, v{aEr}
s_waitcnt vmcnt(2)
""")
for i in range(7):
    a(f"v_lshlrev_b32 v{PR+i}, 16, v{PR+i}")
dt = PR + 6
LOG2E = 1.4426950408889634
import struct
hi = struct.unpack("<f", struct.pack("<f", LOG2E))[0]
a(f"""
s_mov_b32 s38, {f2u(LOG2E)}
v_mul_f32 v{t}, s38, v{dt}
v_fma_f32 v{t2}, v{dt}, s38, -v{t}
v_fmamk_f32 v{t2}, v{dt}, {f2u(LOG2E-hi)}, v{t2}
v_exp_f32 v{t}, v{t}
v_mul_f32 v{t2}, {f2u(0.6931471805599453)}, v{t2}
v_fma_f32 v{t}, v{t}, v{t2}, v{t}
v_cvt_pk_bf16_f32 v{dt}, v{t}, v{t}
v_and_b32 v{dt}, 0xffff0000, v{dt}
v_mul_f32 v{PR}, v{dt}, v{PR}
v_mul_f32 v{PR+1}, v{dt}, v{PR+1}
v_mul_f32 v{PR+2}, v{dt}, v{PR+2}
v_mul_f32 v{PR+3}, v{dt}, v{PR+3}
v_mul_f32 v{PR}, s38, v{PR}
v_mul_f32 v{PR+1}, 0.15915494, v{PR+1}
""")
EE = a.v(6)
SS = a.v(16)
cmul(SS, SS + 1, PR + 4, PR + 5, PR + 2, PR + 3, False)
for i, l in enumerate((1.0, 8.0, 128.0)):
    a(f"v_mul_f32 v{t}, {f2u(l)}, v{PR}\nv_mul_f32 v{t2}, {f2u(l)}, v{PR+1}\nv_exp_f32 v{t}, v{t}\nv_fract_f32 v{t2}, v{t2}")
    a(f"v_cos_f32 v{EE+2*i}, v{t2}\nv_sin_f32 v{EE+2*i+1}, v{t2}\nv_mul_f32 v{EE+2*i}, v{t}, v{EE+2*i}\nv_mul_f32 v{EE+2*i+1}, v{t}, v{EE+2*i+1}")
pk = a.v(2); pa, pb = a.v(2), a.v(2)
a(f"v_mov_b32 v{pk}, 0x3f80\nds_write_b32 v{aEw}, v{pk}")
cvt(pk + 1, EE + 2, EE + 3, False, True)
a(f"ds_write_b32 v{aEw}, v{pk+1} offset:288")
cur = EE + 2
for c in range(2, 16):
    nxt = pa if c % 2 == 0 else pb
    cmul(nxt, nxt + 1, cur, cur + 1, EE + 2, EE + 3, False)
    cvt(pk + c % 2, nxt, nxt + 1, False, True)
    a(f"ds_write_b32 v{aEw}, v{pk+c%2} offset:{288*c}")
    cur = nxt
BF, AF = a.v(16), a.v(16)
for k in range(4):
    a(f"ds_read_b128 {vr(BF+4*k,4)}, v{aEr} offset:{64*k}")
KD = a.v(12)
nrow = [0]


def put_row(src):
    cvt(pk + nrow[0] % 2, src, src + 1)
    a(f"ds_write_b32 v{aEw}, v{pk+nrow[0]%2} offset:{288*(nrow[0]%16)}")
    nrow[0] += 1


def advance(i):
    s = SS + 2 * i
    cmul(pa, pa + 1, s, s + 1, EE + 4, EE + 5, False)
    a(f"v_mov_b32 v{s}, v{pa}\nv_mov_b32 v{s+1}, v{pa+1}")
    put_row(pa)


def read_tile():
    for k in range(4):
        a(f"ds_read_b128 {vr(AF+4*k,4)}, v{aEr} offset:{64*k}")


def mma_tile(T, pending):
    a(f"s_waitcnt lgkmcnt({pending})")
    for k in range(4):
        mfma32(KD + 4 * T, AF + 4 * k, BF + 4 * k, KD + 4 * T if k else None)


put_row(SS)
for i in range(1, 8):
    cmul(SS + 2 * i, SS + 2 * i + 1, SS + 2 * i - 2, SS + 2 * i - 1, EE, EE + 1, False)
    put_row(SS + 2 * i)
for i in range(8):
    advance(i)
read_tile()
for q in range(2):
    for i in (0, 2, 4, 6):
        advance(i)
mma_tile(0, 8)
a("s_waitcnt vmcnt(0)")
stamp()
a("s_barrier")
for q in range(4):
    for i in (0, 4):
        advance(i)
read_tile()
for q in range(5):
    advance(0)
mma_tile(1, 5)
for q in range(4):
    advance(0)
read_tile()
aK = a.v(4)
a(f"""
s_mul_i32 s38, s44, {KCS}
s_add_u32 s38, s38, {KC}
v_lshlrev_b32 v{t}, 7, v{vGh}
v_lshl_add_u32 v{t}, v{vG1}, 2, v{t}
v_lshl_add_u32 v{t}, v{vC}, 3, v{t}
v_lshl_add_u32 v{aK}, v{t}, 2, s38
v_lshlrev_b32 v{t}, 6, v{vG}
v_sub_u32 v{t2}, 2, v{vGh}
v_lshlrev_b32 v{t2}, v{t2}, v{vC}
v_add3_u32 v{t}, v{t}, v{t2}, 256
v_lshl_add_u32 v{aK+1}, v{t}, 2, s38
v_mul_u32_u24 v{t}, 120, v{vGh}
v_add3_u32 v{aK+2}, v{aK+1}, v{t}, 8
v_lshl_add_u32 v{t}, v{vG}, 6, v{vC}
v_lshl_add_u32 v{aK+3}, v{t}, 2, s38
""".replace("v_add3_u32 v%d, v%d, v%d, 256" % (t, t, t2), "v_add_u32 v%d, v%d, v%d\nv_add_u32 v%d, 256, v%d" % (t, t, t2, t, t)))
mma_tile(2, 0)
aH = aEw
Lodd, Lred = a.label("odd"), a.label("red")
a(f"s_lshl_b32 s38, s44, 12\ns_add_u32 s38, s38, {UT0}\nv_lshl_add_u32 v{aH}, v{vL}, 4, s38\ns_and_b32 s38, {WV}, 1\ns_cmp_eq_u32 s38, 0\ns_cbranch_scc1 {Lodd}")
for T in range(3):
    a(f"ds_write_b128 v{aH}, {vr(KD+4*T,4)} offset:{1024*T}")
a(f"{Lodd}:\ns_waitcnt lgkmcnt(0)\ns_barrier\ns_cbranch_scc0 {Lred}")
for T in range(3):
    a(f"ds_read_b128 {vr(AF+4*T,4)}, v{aH} offset:{1024*T}")
for T in range(3):
    a(f"s_waitcnt lgkmcnt({2-T if T == 0 else (2 if T == 1 else 3)})")
    for r in range(4):
        a(f"v_add_f32 v{KD+4*T+r}, v{KD+4*T+r}, v{AF+4*T+r}")
    if T == 0:
        a(f"ds_write_b128 v{aK}, {vr(KD,4)}")
    elif T == 1:
        a(f"ds_write_b64 v{aK+1}, {vr(KD+4,2)}\nds_write_b64 v{aK+2}, {vr(KD+6,2)}")
    else:
        for r in range(4):
            a(f"ds_write_b32 v{aK+3}, v{KD+8+r} offset:{2048+64*r}")
a(f"{Lred}:\ns_waitcnt lgkmcnt(0)\ns_barrier")
stamp()
for r_, n_ in ((PR, 7), (EE, 6), (SS, 16), (pk, 2), (pa, 2), (pb, 2), (BF, 16), (AF, 16), (KD, 12), (aK, 4), (aEw, 1), (aEr, 1)):
    a.free(r_, n_)
KV = a.v(18); RW = a.v(8); aR = a.v()
for dd in range(2):
    for e in range(9):
        a(f"ds_read_b32 v{KV+9*dd+e}, v{EX+e} offset:{KC+KCS*dd}")
a(f"v_lshrrev_b32 v{t}, 8, v0\nv_mul_u32_u24 v{aR}, 16640, v{t}\nv_and_b32 v{t}, 255, v0\nv_lshl_add_u32 v{aR}, v{t}, 4, v{aR}")
a(f"v_lshrrev_b32 v{t}, 6, v0\nv_mul_u32_u24 v{t}, 4160, v{t}\nv_and_b32 v{t2}, 7, v0\nv_lshl_add_u32 v{t}, v{t2}, 2, v{t}\nv_mov_b32 v{t2}, 0")
for dd in range(2):
    a(f"s_waitcnt lgkmcnt({9 if dd == 0 else 2})")
    for i in range(4):
        cvt(RW + i, KV + 9 * dd + 2 * i, KV + 9 * dd + 2 * i + 1)
        cvt(RW + 4 + i, KV + 9 * dd + 2 * i + 1, KV + 9 * dd + 2 * i + 2)
    a(f"ds_write_b128 v{aR}, {vr(RW,4)} offset:{RT+8320*dd}\nds_write_b128 v{aR}, {vr(RW+4,4)} offset:{RT+8320*dd+4160}")
a(f"ds_write_b32 v{t}, v{t2} offset:{RT+4096}")
a.free(KV, 18); a.free(RW, 8); a.free(aR); a.free(EX, 9)
SK = a.v(16)
for p in range(2):
    a(f"v_lshlrev_b32 v{DSK+p}, 16, v{DSK+p}")
    for i in range(4):
        s = SK + 8 * p + 2 * i
        a(f"v_lshlrev_b32 v{s}, 16, v{UG+4*p+i}\nv_and_b32 v{s+1}, 0xffff0000, v{UG+4*p+i}\nv_mul_f32 v{s}, v{DSK+p}, v{s}\nv_mul_f32 v{s+1}, v{DSK+p}, v{s+1}")
        cvt(s + 1, s, s + 1)
        a(f"v_lshlrev_b32 v{s}, 16, v{s+1}\nv_and_b32 v{s+1}, 0xffff0000, v{s+1}")
old0, old1 = a.v(), a.v()
a(f"v_mov_b32 v{old0}, v{UG}\nv_mov_b32 v{old1}, v{UG+4}")
a.free(UG, 8); a.free(DSK, 2)
aG, aUTw, aYr, aYw, aUf = [a.v() for _ in range(5)]
aT = a.v(4)
a(f"""
v_lshrrev_b32 v{t}, 3, v0
v_and_b32 v{t2}, 7, v0
v_lshlrev_b32 v{aG}, 14, v{t}
v_lshl_add_u32 v{aG}, v{t2}, 4, v{aG}
v_and_b32 v{aYr}, 7, v{t}
v_xor_b32 v{aYr}, v{aYr}, v{t2}
v_lshlrev_b32 v{aYr}, 4, v{aYr}
v_lshl_add_u32 v{aYr}, v{t}, 7, v{aYr}
v_lshlrev_b32 v{aUTw}, 5, v{t}
v_and_b32 v{t}, 3, v0
v_mul_u32_u24 v{t}, {UTS}, v{t}
v_lshrrev_b32 v{t2}, 2, v{t2}
v_lshl_add_u32 v{t}, v{t2}, 4, v{t}
v_add_u32 v{aUTw}, v{aUTw}, v{t}
s_lshl_b32 s60, {IDX}, 7
s_add_u32 s60, s60, {WS_U}
s_add_u32 s61, s60, 0x100000
v_lshl_add_u32 v{t}, v{vGh}, 2, {WV}
v_and_b32 v{t2}, 7, v{vC}
v_xor_b32 v{t}, v{t}, v{t2}
v_lshlrev_b32 v{aYw}, 4, v{t}
v_lshl_add_u32 v{aYw}, v{vG1}, 3, v{aYw}
v_lshl_add_u32 v{aYw}, v{vC}, 7, v{aYw}
s_mul_i32 s38, {WV}, {UTS}
s_add_u32 s38, s38, {UT+480}
v_lshlrev_b32 v{aUf}, 5, v{vC}
v_lshl_add_u32 v{aUf}, v{vG}, 4, v{aUf}
v_add_u32 v{aUf}, s38, v{aUf}
s_mul_i32 s38, {WV}, 8320
s_add_u32 s38, s38, {RT+4160-512}
v_sub_u32 v{t}, 2031, v{vC}
v_lshrrev_b32 v{t2}, 1, v{t}
v_lshl_add_u32 v{t2}, v{vG}, 2, v{t2}
v_lshl_add_u32 v{t2}, v{t2}, 2, s38
v_and_b32 v{t}, 1, v{vC}
v_mul_u32_u24 v{t}, 4160, v{t}
v_sub_u32 v{aT}, v{t2}, v{t}
v_add_u32 v{aT+1}, -1024, v{aT}
v_add_u32 v{aT+2}, -2048, v{aT}
v_add_u32 v{aT+3}, -3072, v{aT}
s_waitcnt lgkmcnt(0)
""")
stamp()
a("s_barrier")
stamp()
GI = a.v(8)
a(f"buffer_load_dwordx4 {vr(GI,4)}, v{aG}, {SRD}, s60 offen sc1\nbuffer_load_dwordx4 {vr(GI+4,4)}, v{aG}, {SRD}, s61 offen sc1")
TF, UF, AC = a.v(32), a.v(32), a.v(32)


def read_T(mu):
    o_ = 0 if mu & 1 else 128
    a(f"ds_read2_b32 {vr(TF+4*mu,2)}, v{aT+(mu>>1)} offset0:{o_} offset1:{o_+1}")
    a(f"ds_read2_b32 {vr(TF+4*mu+2,2)}, v{aT+(mu>>1)} offset0:{o_+2} offset1:{o_+3}")


def read_U(nu):
    a(f"ds_read_b128 {vr(UF+4*nu,4)}, v{aUf} offset:{512*nu}")


Lnc = a.label("noconv0")
a(f"s_cmp_ge_u32 {WV}, 4\ns_cbranch_scc1 {Lnc}")
for mu in range(7, 0, -1):
    read_T(mu)
for i in range(32):
    a(f"v_mov_b32 v{AC+i}, 0")
for k in range(1, 4):
    a(f"v_add_u32 v{aT+k}, -64, v{aT+k}")
a(f"{Lnc}:")
a(f"s_waitcnt vmcnt(1)\nds_write_b128 v{aUTw}, {vr(GI,4)} offset:{UT+512}")
a(f"s_waitcnt vmcnt(0)\nds_write_b128 v{aUTw}, {vr(GI+4,4)} offset:{UT+512+2048}")
nold0, nold1 = a.v(), a.v()
a(f"v_not_b32 v{nold0}, v{GI}\nv_not_b32 v{nold1}, v{GI+4}")
a("s_waitcnt lgkmcnt(0)\ns_barrier")
stamp()
Lnc = a.label("noconv1"); Lloop = a.label("rho")
a(f"s_cmp_ge_u32 {WV}, 4\ns_cbranch_scc1 {Lnc}")
for nu in range(8):
    read_U(nu)
read_T(0)
a(f"v_add_u32 v{aT}, -64, v{aT}\nv_add_u32 v{aUf}, -64, v{aUf}\ns_mov_b32 s38, 0")
a(f".p2align 6\n{Lloop}:")
queue = [("U", n) for n in range(8)] + [("T", 0), ("T", 0)]
for mu in range(7, -1, -1):
    for J in range(mu, 8):
        nu = J - mu
        last = max([i for i, x in enumerate(queue) if x in (("U", nu), ("T", mu))], default=-1)
        if last >= 0:
            a(f"s_waitcnt lgkmcnt({len(queue)-1-last})")
            queue = queue[last + 1:]
        mfma32(AC + 4 * J, TF + 4 * mu, UF + 4 * nu, AC + 4 * J)
        if mu == 0:
            read_U(nu); queue.append(("Un", nu))
    if mu == 4:
        a("s_waitcnt lgkmcnt(6)")
        queue = queue[-6:]
    read_T(mu); queue += [("Tn", mu), ("Tn", mu)]
    if mu & 1 == 0:
        a(f"v_add_u32 v{aT+(mu>>1)}, -64, v{aT+(mu>>1)}")
    if mu == 1:
        a("s_waitcnt lgkmcnt(4)")
        queue = queue[-4:]
    assert len(queue) <= 15
a(f"v_add_u32 v{aUf}, -64, v{aUf}\ns_add_u32 s38, s38, 1\ns_cmp_lt_u32 s38, 8\ns_cbranch_scc1 {Lloop}")
a("s_waitcnt lgkmcnt(0)")
for J in range(8):
    cvt(TF + 2 * J, AC + 4 * J, AC + 4 * J + 1)
    cvt(TF + 2 * J + 1, AC + 4 * J + 2, AC + 4 * J + 3)
    a(f"ds_write_b64 v{aYw}, {vr(TF+2*J,2)} offset:{YS+2048*J}")
a(f"{Lnc}:\ns_waitcnt lgkmcnt(0)")
stamp()
a("s_barrier")
a(f"ds_read_b128 {vr(GI,4)}, v{aYr} offset:{YS}\nds_read_b128 {vr(GI+4,4)}, v{aYr} offset:{YS+8192}")
a(f"s_waitcnt lgkmcnt(1)\nv_bfi_b32 v{GI}, 1, v{nold0}, v{GI}\nbuffer_store_dwordx4 {vr(GI,4)}, v{aG}, {SRD}, s60 offen sc1")
a(f"s_waitcnt lgkmcnt(0)\nv_bfi_b32 v{GI+4}, 1, v{nold1}, v{GI+4}\nbuffer_store_dwordx4 {vr(GI+4,4)}, v{aG}, {SRD}, s61 offen sc1")
stamp()
aOw, aOr, aO = a.v(), a.v(), a.v()
a(f"""
s_mul_i32 s38, {WV}, 3072
v_lshl_add_u32 v{t}, v{vGh}, 4, v{vC}
v_mul_u32_u24 v{aOw}, 48, v{t}
v_lshl_add_u32 v{aOw}, v{vG1}, 4, v{aOw}
v_add_u32 v{aOw}, s38, v{aOw}
v_lshl_add_u32 v{t}, v{vG}, 3, v{vR}
v_mul_u32_u24 v{aOr}, 48, v{t}
v_lshl_add_u32 v{aOr}, v{vCq}, 3, v{aOr}
v_add_u32 v{aOr}, s38, v{aOr}
s_lshl_b32 s38, {IDX}, 15
s_lshl_b32 s39, {WV}, 7
s_add_u32 s38, s38, s39
v_lshlrev_b32 v{aO}, 11, v{vC}
v_lshl_add_u32 v{aO}, v{vG}, 4, v{aO}
v_add_u32 v{aO}, s38, v{aO}
s_waitcnt vmcnt(0)
""")
if opt["pslp"]:
    a(f"s_sleep {opt['pslp']}")
stamp()
GY = UF
poll_toggle(GY, GY + 4, aUo, "s46", "s46", old0, old1, imm1=1024)
stamp()
for p in range(2):
    for i in range(4):
        y = GY + 4 * p + i; s = SK + 8 * p + 2 * i
        a(f"v_lshlrev_b32 v{t}, 16, v{y}\nv_and_b32 v{t2}, 0xffff0000, v{y}\nv_add_f32 v{t}, v{t}, v{s}\nv_add_f32 v{t2}, v{t2}, v{s+1}")
        cvt(y, t, t2)
    a(f"ds_write_b128 v{aOw}, {vr(GY+4*p,4)} offset:{OT+1536*p}")
for p in range(2):
    for hh in range(2):
        a(f"ds_read_b64_tr_b16 {vr(GI+4*p+2*hh,2)}, v{aOr} offset:{OT+1536*p+192*hh}")
for p in range(2):
    a(f"s_waitcnt lgkmcnt({2-2*p})\nglobal_store_dwordx4 v{aO}, {vr(GI+4*p,4)}, {S_OUT} offset:{64*p} sc1")
stamp()
if STAMP:
    a("s_waitcnt vmcnt(0)")
stamp()
a("s_branch L_fin")
a(f"{LH}:")
nstamp[0] = common_stamp
helper_start(WS_EA, vEp, vL, "L_conv", "L_codeend")
a(f"s_barrier\ns_waitcnt vmcnt(0)\nv_add_u32 v{vEp}, 1, v{vEp}\ns_barrier")
stamp()
helper_flags(WS_FLA, WS_EA, vEp)
a("s_barrier\ns_barrier")
stamp()
helper_poll(WS_FLA, WS_EA, vEp, vL)
stamp()
a("s_barrier\ns_barrier\ns_barrier")
a("L_fin:")
dump_stamps()
a("L_end:\ns_endpgm\nL_codeend:")

body = a.finish()
nv = max(a.vmax, vmax_spec)
nv = (nv + 7) // 8 * 8
hdr = open("concat_heads__ssm_conv_s4__spectral_gfnet__prompt.s.ref").read().split("\n")
out = [l for l in hdr if l.startswith(";") and "@launch" not in l and "Override" not in l and "grid=ceil" not in l]
out.append(f"; @launch grid=(256,1,1) block=(576,1,1) lds={LDS_BYTES}")
out.append('.amdgcn_target "amdgcn-amd-amdhsa--gfx950"\n.text')
out.append(f".globl {KN}\n.p2align 8\n.type {KN},@function\n{KN}:")
out += [("    " + l if not (l.endswith(":") or l.startswith(".")) else l) for l in body]
out.append('.section .rodata,"a"\n.p2align 6')
out.append(f""".amdhsa_kernel {KN}
  .amdhsa_next_free_vgpr {nv}
  .amdhsa_next_free_sgpr 102
  .amdhsa_accum_offset {nv}
  .amdhsa_group_segment_fixed_size 0
  .amdhsa_kernarg_size 120
  .amdhsa_user_sgpr_count 2
  .amdhsa_user_sgpr_kernarg_segment_ptr 1
  .amdhsa_system_sgpr_workgroup_id_x 1
.end_amdhsa_kernel""")
print("\n".join(out))
print(f"vgprs spec {vmax_spec} conv {a.vmax} -> {nv}; nops added {a.added}; lines {len(body)}", file=sys.stderr)
```

```python
import sys
sys.path.insert(0, "work")
from asmlib import Asm, vr, f2u

opt = dict(stamp=0, amp=99, role=0, nt=0, fslp=8, pslp=2, prefetch=1, maxpoll=400000)
for arg in sys.argv[1:]:
    k, v = arg.split("=")
    opt[k] = int(v)
STAMP = opt["stamp"]
NT = " nt" if opt["nt"] else ""
KN = "concat_heads__ssm_conv_s4__spectral_gfnet__prompt_kernel"

WS_X1, WS_U = 0x000000, 0x200000
WS_FLB, WS_FLA = 0x400000, 0x404000
WS_EB, WS_EA = 0x408000, 0x408080
WS_STAMP = 0x600000
WS_SIZE = 0x800000
OOB = 0x40000000
XT, T1, S1 = 0, 16384, 1072
XS, WSL, ZT, T2, S2, ZS = 0, 18944, 0, 23040, 1216, 43712
UT0, YS, UT, UTS, KC, KCS, EB, RT, OT = 0, 0, 16384, 4640, 34944, 3088, 51328, 51328, 51328
LDS_BYTES = 88192

S_U, S_ARE, S_AIM, S_BRE, S_BIM, S_CRE, S_CIM, S_LDT = [f"s[{4+2*i}:{5+2*i}]" for i in range(8)]
S_DSK, S_X, S_WR, S_WI, S_OUT = "s[20:21]", "s[22:23]", "s[24:25]", "s[26:27]", "s[28:29]"
SRD = "s[32:35]"
IDX, WV = "s36", "s37"

a = Asm()
nstamp = [0]


def stamp():
    if STAMP:
        i = nstamp[0]
        nstamp[0] += 1
        assert i < 16
        a(f"s_memrealtime s[{64+2*i}:{65+2*i}]\ns_waitcnt lgkmcnt(0)")


def dump_stamps():
    if STAMP == 3:
        L = a.label("amp")
        i = opt["amp"]
        a(f"s_waitcnt vmcnt(0)\ns_memrealtime s[96:97]\ns_waitcnt lgkmcnt(0)")
        src = "s96" if i == 99 else f"s{64+2*i}"
        a(f"s_cmp_eq_u32 {WV}, 8\ns_cbranch_scc1 L_end\ns_lshr_b32 s38, s2, 7\ns_cmp_lg_u32 s38, {opt['role']}\ns_cbranch_scc1 L_end")
        a(f"s_sub_u32 s38, {src}, s98\ns_min_u32 s38, s38, 5000\ns_mul_i32 s38, s38, 10\ns_add_u32 s38, s38, s96")
        a(f"{L}:\ns_memrealtime s[96:97]\ns_waitcnt lgkmcnt(0)\ns_sub_u32 s39, s38, s96\ns_cmp_gt_i32 s39, 0\ns_cbranch_scc1 {L}")
    elif STAMP == 2:
        v0_, v1_ = a.v(), a.v()
        Lb, Le = a.label("dbgb"), a.label("dbge")
        a(f"s_mov_b64 exec, 1\ns_mov_b32 s40, s30\ns_mov_b32 s41, s31\ns_mov_b32 s42, 256\ns_mov_b32 s43, 0x20000\nv_mov_b32 v{v0_}, 0")
        a(f"s_not_b32 s38, s64\nv_mov_b32 v{v1_}, s38\nbuffer_atomic_umax v{v1_}, v{v0_}, s[40:43], 0 offen sc1")
        a(f"s_cmp_eq_u32 {WV}, 8\ns_cbranch_scc1 {Le}\ns_cmp_ge_u32 s2, 128\ns_cbranch_scc0 {Lb}")
        for j, i in enumerate((0, 2, 4, 6, 7, 9, 11, 13)):
            a(f"v_mov_b32 v{v1_}, s{64+2*i}\nbuffer_atomic_umax v{v1_}, v{v0_}, s[40:43], 0 offen offset:{32+4*j} sc1")
        a(f"s_branch {Le}\n{Lb}:")
        for j, i in enumerate((2, 3, 5, 6, 7, 9, 12)):
            a(f"v_mov_b32 v{v1_}, s{64+2*i}\nbuffer_atomic_umax v{v1_}, v{v0_}, s[40:43], 0 offen offset:{4+4*j} sc1")
        a(f"{Le}:")
        a.free(v0_); a.free(v1_)
    elif STAMP:
        v0_, v1_ = a.v(), a.v()
        a(f"s_mov_b64 exec, 1\ns_lshl_b32 s38, s2, 4\ns_add_u32 s38, s38, {WV}\ns_lshl_b32 s38, s38, 6\ns_add_u32 s38, s38, {WS_STAMP}\nv_mov_b32 v{v0_}, s38")
        for i in range(16):
            a(f"v_mov_b32 v{v1_}, s{64+2*i}\nbuffer_store_dword v{v1_}, v{v0_}, {SRD}, 0 offen offset:{4*i}")
        a.free(v0_); a.free(v1_)


def mfma32(d, A, B, c):
    a(f"v_mfma_f32_16x16x32_bf16 {vr(d,4)}, {vr(A,4)}, {vr(B,4)}, {vr(c,4) if c is not None else 0}")


def mfma16(d, A, B):
    a(f"v_mfma_f32_16x16x16_bf16 {vr(d,4)}, {vr(A,2)}, {vr(B,2)}, 0")


def cvt(d, x, y, nx=False, ny=False):
    a(f"v_cvt_pk_bf16_f32 v{d}, {'-' if nx else ''}v{x}, {'-' if ny else ''}v{y}")


def cmul(dr, di, x, y, c, s, conj):
    a(f"v_mul_f32 v{dr}, v{x}, v{c}\nv_mul_f32 v{di}, v{y}, v{c}")
    if conj:
        a(f"v_fmac_f32 v{dr}, v{y}, v{s}\nv_fma_f32 v{di}, -v{x}, v{s}, v{di}")
    else:
        a(f"v_fma_f32 v{dr}, -v{y}, v{s}, v{dr}\nv_fmac_f32 v{di}, v{x}, v{s}")


def sincos_chain(n, a0, step, cos_dst, sin_dst):
    for i in range(n):
        a(f"v_cos_f32 v{cos_dst+i}, v{a0}\nv_sin_f32 v{sin_dst+i}, v{a0}")
        if i < n - 1:
            a(f"v_add_f32 v{a0}, v{a0}, v{step}")


def poll_toggle(g0, g1, vaddr, off0, off1, old0, old1, imm1=None):
    L, Le = a.label("poll"), a.label("polled")
    t0, t1 = a.v(), a.v()
    a(f"s_mov_b32 s38, 0\n{L}:")
    a(f"buffer_load_dwordx4 {vr(g0,4)}, v{vaddr}, {SRD}, {off0} offen sc1")
    a(f"buffer_load_dwordx4 {vr(g1,4)}, v{vaddr}, {SRD}, {off1} offen{'' if imm1 is None else f' offset:{imm1}'} sc1")
    a(f"s_add_u32 s38, s38, 1\ns_waitcnt vmcnt(0)")
    a(f"v_xor_b32 v{t0}, v{g0}, v{old0}\nv_xor_b32 v{t1}, v{g1}, v{old1}\nv_and_b32 v{t0}, v{t0}, v{t1}\nv_and_b32 v{t0}, 1, v{t0}")
    a(f"v_cmp_eq_u32 vcc, 0, v{t0}\ns_cbranch_vccz {Le}\ns_mov_b64 exec, vcc")
    a(f"s_cmp_lt_u32 s38, {opt['maxpoll']}\ns_cbranch_scc1 {L}\n{Le}:\ns_mov_b64 exec, -1")
    a.free(t0); a.free(t1)


def helper_flags(fl, ep, vep):
    t = a.v()
    a(f"s_lshl_b32 s38, {IDX}, 7\ns_add_u32 s38, s38, {fl}\nv_mov_b32 v{t}, s38\ns_mov_b64 exec, 1")
    a(f"buffer_store_dword v{vep}, v{t}, {SRD}, 0 offen sc1\ns_mov_b64 exec, -1")
    a.free(t)


def helper_poll(fl, ep, vep, vL):
    L, Le, Ls = a.label("fpoll"), a.label("fpolled"), a.label("noepoch")
    t, f0, f1 = a.v(), a.v(), a.v()
    a(f"v_lshlrev_b32 v{t}, 7, v{vL}\ns_mov_b32 s39, {fl}\ns_mov_b32 s40, {fl+8192}\ns_mov_b32 s38, 0")
    if opt["fslp"]:
        a(f"s_sleep {opt['fslp']}")
    a(f"{L}:\nbuffer_load_dword v{f0}, v{t}, {SRD}, s39 offen sc1\nbuffer_load_dword v{f1}, v{t}, {SRD}, s40 offen sc1")
    a(f"s_add_u32 s38, s38, 1\ns_waitcnt vmcnt(0)\nv_xor_b32 v{f0}, v{f0}, v{vep}\nv_xor_b32 v{f1}, v{f1}, v{vep}\nv_or_b32 v{f0}, v{f0}, v{f1}")
    a(f"v_cmp_ne_u32 vcc, 0, v{f0}\ns_cbranch_vccz {Le}\ns_mov_b64 exec, vcc")
    a(f"s_cmp_lt_u32 s38, {opt['maxpoll']}\ns_cbranch_scc1 {L}\n{Le}:\ns_mov_b64 exec, 1")
    a(f"s_cmp_lg_u32 {IDX}, 0\ns_cbranch_scc1 {Ls}\nv_mov_b32 v{t}, {ep}\nbuffer_store_dword v{vep}, v{t}, {SRD}, 0 offen sc1\n{Ls}:\ns_mov_b64 exec, -1")
    a.free(t); a.free(f0); a.free(f1)


def helper_start(ep, vep, vL, first, last):
    t, j = a.v(), vep + 1
    a(f"v_mov_b32 v{t}, {ep}\nbuffer_load_dword v{vep}, v{t}, {SRD}, 0 offen sc1")
    if opt["prefetch"]:
        Lp = a.label("pc")
        a(f"s_getpc_b64 s[40:41]\n{Lp}:\ns_sub_u32 s40, s40, {Lp}-{first}\ns_subb_u32 s41, s41, 0\ns_mov_b32 s42, {last}-{first}\ns_mov_b32 s43, 0x20000")
        a(f"v_lshlrev_b32 v{t}, 7, v{vL}\ns_mov_b32 s38, 8192")
        a(f"buffer_load_dword v{j}, v{t}, s[40:43], 0 offen\nbuffer_load_dword v{j}, v{t}, s[40:43], s38 offen")
    a.free(t)


vL, vC, vG = a.v(), a.v(), a.v()
vt0, vt1 = a.v(), a.v()
if STAMP == 3:
    a("s_memrealtime s[98:99]")
a(f"""
s_load_dwordx16 s[4:19], s[0:1], 0
s_load_dwordx8 s[20:27], s[0:1], 64
s_load_dwordx4 s[28:31], s[0:1], 96
s_load_dwordx2 s[32:33], s[0:1], 112
s_cmp_ge_u32 s2, 256
s_cbranch_scc1 L_end
v_lshrrev_b32 v{vt0}, 6, v0
v_and_b32 v{vL}, 63, v0
s_and_b32 s38, s2, 7
v_readfirstlane_b32 {WV}, v{vt0}
s_bfe_u32 {IDX}, s2, 0x40003
s_lshl_b32 s38, s38, 4
s_add_u32 {IDX}, {IDX}, s38
s_lshl_b32 s39, {IDX}, 14
s_lshl_b32 s40, {IDX}, 10
s_cmp_ge_u32 s2, 128
s_cselect_b32 s39, s39, s40
s_cselect_b32 s40, 1, 0x80
s_lshl_b32 s40, s40, 10
s_lshl_b32 s38, {WV}, 7
s_add_u32 s39, s39, s38
s_lshl_b32 s41, {WV}, 11
s_mov_b32 m0, s41
v_lshrrev_b32 v{vt0}, 2, v{vL}
v_and_b32 v{vt0}, 4, v{vt0}
v_and_b32 v{vt1}, 7, v{vL}
v_xor_b32 v{vt0}, v{vt0}, v{vt1}
v_lshl_add_u32 v{vt0}, v{vt0}, 4, s39
v_lshrrev_b32 v{vt1}, 3, v{vL}
v_mad_u32_u24 v{vt0}, v{vt1}, s40, v{vt0}
s_lshl_b32 s40, s40, 3
s_sub_u32 s40, s40, 1024
v_xor_b32 v{vt1}, 32, v{vt0}
v_add_u32 v{vt1}, s40, v{vt1}
s_mov_b32 s34, {WS_SIZE}
s_mov_b32 s35, 0x20000
v_and_b32 v{vC}, 15, v{vL}
v_lshrrev_b32 v{vG}, 4, v{vL}
s_cmp_ge_u32 s2, 128
s_waitcnt lgkmcnt(0)
s_cselect_b64 s[42:43], {S_U}, {S_X}
s_cmp_eq_u32 {WV}, 8
s_cbranch_scc1 L_noload
global_load_lds_dwordx4 v{vt0}, s[42:43]{NT}
global_load_lds_dwordx4 v{vt1}, s[42:43] offset:1024{NT}
L_noload:
""")
stamp()
a("s_cmp_ge_u32 s2, 128\ns_cbranch_scc1 L_conv")
a.free(vt0); a.free(vt1)
common_free = set(a.vfree)
common_stamp = nstamp[0]

a("L_spec:")
vEp = a.v(2)
Lh = a.label("bh0")
a(f"s_cmp_lg_u32 {WV}, 8\ns_cbranch_scc1 {Lh}")
helper_start(WS_EB, vEp, vL, "L_spec", "L_conv")
z = a.v(4, 2); t = a.v()
a(f"v_mov_b32 v{z}, 0\nv_mov_b32 v{z+1}, 0\nv_mov_b32 v{z+2}, 0\nv_mov_b32 v{z+3}, 0\nv_lshlrev_b32 v{t}, 4, v{vL}")
a(f"ds_write_b128 v{t}, {vr(z,4)} offset:{T1+16*S1}\nds_write_b128 v{t}, {vr(z,4)} offset:{T1+16*S1+48}")
a.free(z, 4); a.free(t)
a(f"{Lh}:")
a(f"""
s_lshl_b32 s44, {WV}, 1
s_add_u32 s45, s44, 1
s_lshl_b32 s46, {WV}, 11
s_and_b32 s38, {WV}, 7
s_lshr_b32 s39, {WV}, 3
s_lshl_b32 s40, s39, 10
s_cmp_eq_u32 s38, 0
s_cselect_b32 s44, s39, s44
s_cselect_b32 s45, 16, s45
s_cselect_b32 s46, s40, s46
s_cselect_b32 s48, 1, 0
s_cselect_b32 s47, {OOB>>10}, 1
s_lshl_b32 s47, s47, 10
s_mov_b32 s49, 0
s_mov_b32 s50, s48
s_lshl_b32 s38, {IDX}, 14
s_add_u32 s46, s46, s38
s_add_u32 s47, s47, s46
""")
vR, vCq = a.v(), a.v()
fC, fG = a.v(), a.v()
a(f"v_bfe_u32 v{vR}, v{vL}, 2, 2\nv_and_b32 v{vCq}, 3, v{vL}\nv_cvt_f32_u32 v{fC}, v{vC}\nv_cvt_f32_u32 v{fG}, v{vG}")
vG1, vGh = a.v(), a.v()
a(f"v_and_b32 v{vG1}, 1, v{vG}\nv_lshrrev_b32 v{vGh}, 1, v{vG}")
fG1x8, fGhq = a.v(), a.v()
a(f"v_cvt_f32_u32 v{fG1x8}, v{vG1}\nv_cvt_f32_u32 v{fGhq}, v{vGh}\nv_mul_f32 v{fG1x8}, 0x41000000, v{fG1x8}\nv_mul_f32 v{fGhq}, 0x3e800000, v{fGhq}")

tc = a.v(16); ts = tc + 8
ang, stp = a.v(), a.v()
F1 = a.v(2)
a(f"""
v_lshrrev_b32 v{ang}, 1, v{vC}
v_and_b32 v{stp}, 1, v{vC}
v_cmp_eq_u32 vcc, 1, v{vC}
v_cvt_f32_u32 v{tc}, v{stp}
v_cndmask_b32 v{ang}, v{ang}, 8, vcc
v_mul_f32 v{tc}, 0x3e800000, v{tc}
v_cvt_f32_u32 v{stp}, v{ang}
v_cndmask_b32 v{tc}, v{tc}, 0, vcc
v_mul_f32 v{stp}, 0x3d800000, v{stp}
v_mul_f32 v{ang}, v{fG}, v{stp}
v_fma_f32 v{ang}, v{ang}, 4.0, v{tc}
""")
for i in range(4):
    a(f"v_cos_f32 v{tc+i}, v{ang}")
    if i < 3:
        a(f"v_add_f32 v{ang}, v{ang}, v{stp}")
cvt(F1, tc, tc + 1); cvt(F1 + 1, tc + 2, tc + 3)
B2re, B2im = a.v(4), a.v(4)
a(f"v_mul_f32 v{stp}, 0x3d800000, v{fC}\nv_fma_f32 v{ang}, v{fG1x8}, v{stp}, -v{fGhq}")
sincos_chain(8, ang, stp, tc, ts)
for i in range(4):
    cvt(B2re + i, tc + 2 * i, tc + 2 * i + 1)
    cvt(B2im + i, ts + 2 * i, ts + 2 * i + 1, True, True)
TW1c, TW1s = a.v(8), a.v(8)
ang2 = a.v()
a(f"v_mul_f32 v{stp}, 0x3b000000, v{fC}\nv_mul_f32 v{ang}, v{fG}, v{stp}\nv_mul_f32 v{ang}, 4.0, v{ang}\nv_fmamk_f32 v{ang2}, v{stp}, 0x41800000, v{ang}")
sincos_chain(4, ang, stp, TW1c, TW1s)
sincos_chain(4, ang2, stp, TW1c + 4, TW1s + 4)
COS = [a.v(4), a.v(4)]; SIN = [a.v(4), a.v(4)]; NSIN = [a.v(4), a.v(4)]
a(f"v_mul_f32 v{stp}, 0x3d000000, v{fC}\nv_mul_f32 v{ang}, v{fG}, v{stp}\nv_mul_f32 v{ang}, 4.0, v{ang}\nv_fmamk_f32 v{ang2}, v{stp}, 0x41800000, v{ang}")
sincos_chain(4, ang, stp, tc, ts)
sincos_chain(4, ang2, stp, tc + 4, ts + 4)
for i in range(4):
    cvt(COS[0] + i, tc + 2 * i, tc + 2 * i + 1)
    cvt(SIN[0] + i, ts + 2 * i, ts + 2 * i + 1)
    cvt(NSIN[0] + i, ts + 2 * i, ts + 2 * i + 1, True, True)
    cvt(COS[1] + i, tc + 2 * i, tc + 2 * i + 1, False, True)
    cvt(SIN[1] + i, ts + 2 * i, ts + 2 * i + 1, False, True)
    cvt(NSIN[1] + i, ts + 2 * i, ts + 2 * i + 1, True, False)

aX0, aX1, aT1w, aT1r, aOut = a.v(), a.v(), a.v(), a.v(), a.v()
t = a.v()
a(f"""
v_lshl_add_u32 v{t}, v{vG}, 2, v{vR}
v_lshlrev_b32 v{aX0}, 1, v{vR}
v_and_b32 v{aX0}, 4, v{aX0}
v_lshl_add_u32 v{aX0}, v{vGh}, 1, v{aX0}
v_xor_b32 v{aX0}, v{aX0}, v{vCq}
v_lshlrev_b32 v{aX0}, 4, v{aX0}
v_lshl_add_u32 v{aX0}, v{t}, 7, v{aX0}
v_add_u32 v{aX0}, s41, v{aX0}
v_xor_b32 v{aX1}, 64, v{aX0}
s_lshl_b32 s38, {WV}, 7
s_lshr_b32 s39, {WV}, 2
s_lshl_b32 s39, s39, 5
s_add_u32 s38, s38, s39
v_mul_u32_u24 v{aT1w}, {S1}, v{vC}
v_lshl_add_u32 v{aT1w}, v{vG}, 4, v{aT1w}
v_add_u32 v{aT1w}, s38, v{aT1w}
s_mul_i32 s38, s44, {S1}
s_mul_i32 s39, s45, {S1}
s_sub_u32 s39, s39, s38
v_mul_u32_u24 v{aT1r}, 544, v{vG1}
v_lshl_add_u32 v{aT1r}, v{vR}, 6, v{aT1r}
v_lshl_add_u32 v{aT1r}, v{vCq}, 3, v{aT1r}
v_mad_u32_u24 v{aT1r}, v{vGh}, s39, v{aT1r}
v_add_u32 v{aT1r}, s38, v{aT1r}
v_lshlrev_b32 v{aOut}, 6, v{vC}
v_lshl_add_u32 v{aOut}, v{vG}, 4, v{aOut}
""")
a.free(t)
stamp()
L1 = a.label("bs1")
a(f"s_cmp_eq_u32 {WV}, 8\ns_cbranch_scc1 {L1}\ns_waitcnt vmcnt(0)")
A = a.v(8); D = a.v(16); P4 = a.v(8)
for p in range(2):
    for e in range(2):
        a(f"ds_read_b64_tr_b16 {vr(A+4*p+2*e,2)}, v{aX1 if p else aX0} offset:{XT+8*e}")
for i in range(4):
    a(f"s_waitcnt lgkmcnt({3-i})")
    mfma16(D + 4 * i, A + 2 * i, F1)
for p in range(2):
    for i in range(4):
        cvt(P4 + 4 * p + i, D + 8 * p + 2 * i, D + 8 * p + 2 * i + 1)
    a(f"ds_write_b128 v{aT1w}, {vr(P4+4*p,4)} offset:{T1+64*p}")
a(f"{L1}:\ns_waitcnt lgkmcnt(0)\ns_barrier")
stamp()
for tau in range(2):
    for h in range(2):
        a(f"ds_read_b64_tr_b16 {vr(A+4*tau+2*h,2)}, v{aT1r} offset:{T1+256*h+32*tau}")
for tau in range(2):
    a(f"s_waitcnt lgkmcnt({2-2*tau})")
    mfma32(D + 8 * tau, A + 4 * tau, B2re, None)
    mfma32(D + 8 * tau + 4, A + 4 * tau, B2im, None)
tmp = a.v(4)
A3 = P4
for tau in range(2):
    for pr in range(2):
        for i in range(2):
            r = 2 * pr + i
            cmul(tmp + i, tmp + 2 + i, D + 8 * tau + r, D + 8 * tau + 4 + r, TW1c + 4 * tau + r, TW1s + 4 * tau + r, True)
        cvt(A3 + 2 * tau + pr, tmp, tmp + 1)
        cvt(A3 + 4 + 2 * tau + pr, tmp + 2, tmp + 3)
D3 = a.v(16)
for tt in range(2):
    mfma32(D3 + 8 * tt, A3, COS[tt], None)
    mfma32(D3 + 8 * tt + 4, A3, NSIN[tt], None)
for tt in range(2):
    mfma32(D3 + 8 * tt, A3 + 4, SIN[tt], D3 + 8 * tt)
    mfma32(D3 + 8 * tt + 4, A3 + 4, COS[tt], D3 + 8 * tt + 4)
a(f"""
s_lshr_b32 s38, {IDX}, 4
s_and_b32 s39, {IDX}, 7
s_bfe_u32 s40, {IDX}, 0x10003
s_lshl_b32 s51, s40, 3
s_cmp_eq_u32 s38, 0
s_cselect_b32 s51, s51, s38
s_cselect_b32 s40, 0, s40
s_mul_i32 s52, s51, 514
s_lshl_b32 s42, s39, 6
s_add_u32 s52, s52, s42
s_sub_u32 s43, {2048*514 + 2*(256-31)}, s52
s_lshl_b32 s55, {WV}, 3
s_sub_u32 s42, 56, s55
s_cmp_eq_u32 s40, 0
s_cselect_b32 s52, s52, s43
s_cselect_b32 s53, 1, -1
s_cselect_b32 s54, 0, 0x80008000
s_cselect_b32 s55, s55, s42
s_cselect_b32 s42, 0, 0x06060000
s_mul_i32 s53, s53, 8224
s_xor_b32 s56, s42, 0x01000c0c
s_xor_b32 s57, s42, 0x03020c0c
s_xor_b32 s58, s42, 0x05040c0c
s_xor_b32 s59, s42, 0x07060c0c
""")
a(f"v_cndmask_b32 v{D3+4}, v{D3+4}, v{D3+8}, s[48:49]")
GX = A
for tt in range(2):
    for i in range(4):
        cvt(GX + 4 * tt + i, D3 + 8 * tt + 2 * i, D3 + 8 * tt + 2 * i + 1)
    a(f"buffer_store_dwordx4 {vr(GX+4*tt,4)}, v{aOut}, {SRD}, s{46+tt} offen sc1")
old0, old1 = a.v(), a.v()
a(f"v_mov_b32 v{old0}, v{GX}\nv_or_b32 v{old1}, s50, v{GX+4}")
for r_, n_ in ((D, 16), (D3, 16), (P4, 8), (tmp, 4), (F1, 2), (B2re, 4), (B2im, 4), (TW1c, 8), (TW1s, 8), (aX0, 1), (aX1, 1), (aT1w, 1), (aT1r, 1)):
    a.free(r_, n_)
stamp()

LH = a.label("bhelp"); LP3 = a.label("bp3")
a(f"s_cmp_eq_u32 {WV}, 8\ns_cbranch_scc1 {LH}")
WRAW = a.v(8)
aW = a.v(); t = a.v()
a(f"v_and_b32 v{t}, 3, v0\nv_lshl_add_u32 v{t}, v{t}, 4, s52\nv_lshrrev_b32 v{aW}, 2, v0\nv_mad_i32_i24 v{t}, v{aW}, s53, v{t}")
a(f"global_load_dwordx4 {vr(WRAW,4)}, v{t}, {S_WR}{NT}\nglobal_load_dwordx4 {vr(WRAW+4,4)}, v{t}, {S_WI}{NT}")
a(f"v_mul_u32_u24 v{aW}, 80, v{aW}\nv_and_b32 v{t}, 3, v0\nv_lshl_add_u32 v{aW}, v{t}, 4, v{aW}")
a.free(t)
a.free(A, 8)
fF = a.v()
a(f"v_cvt_f32_u32 v{ang}, s51\nv_fmamk_f32 v{fF}, v{fC}, 0x41800000, v{ang}")
B1re, B1im = a.v(4), a.v(4)
a(f"v_mul_f32 v{stp}, 0x3b800000, v{fF}\nv_fma_f32 v{ang2}, v{fG1x8}, v{stp}, -v{fGhq}")
sincos_chain(8, ang2, stp, tc, ts)
for i in range(4):
    cvt(B1re + i, tc + 2 * i, tc + 2 * i + 1)
    cvt(B1im + i, ts + 2 * i, ts + 2 * i + 1, True, True)
TWa = a.v(4)
a(f"v_mul_f32 v{stp}, 0x3a000000, v{fF}\nv_mul_f32 v{ang2}, v{fG}, v{stp}\nv_mul_f32 v{stp}, 4.0, v{stp}")
sincos_chain(2, ang2, stp, TWa, TWa + 2)
A2 = a.v(2)
fH, fO = a.v(), a.v()
a(f"v_lshrrev_b32 v{fH}, 1, v{vC}\nv_and_b32 v{fO}, 1, v{vC}\nv_cvt_f32_u32 v{fH}, v{fH}\nv_cvt_f32_u32 v{fO}, v{fO}")
for i in range(4):
    a(f"v_mul_f32 v{TWa+i}, {f2u(2.0**-19)}, v{TWa+i}")
a(f"v_mul_f32 v{stp}, 0x3e000000, v{fH}\nv_mul_f32 v{ang2}, 0x3e800000, v{fO}\nv_fmac_f32 v{ang2}, v{fG}, v{stp}\nv_mul_f32 v{tc+7}, 4.0, v{stp}")
sincos_chain(2, ang2, tc + 7, tc, ts)
B3re, B3im = a.v(4), a.v(4)
a(f"v_mul_f32 v{ang2}, v{fG}, v{stp}\nv_add_f32 v{ang2}, v{ang2}, v{ang2}")
cvt(A2, tc, ts); cvt(A2 + 1, tc + 1, ts + 1)
sincos_chain(2, ang2, stp, tc, ts)
m0_, m1_ = tc + 6, tc + 7
a(f"v_and_b32 v{m0_}, 1, v{vC}\nv_add_u32 v{m0_}, -1, v{m0_}\nv_not_b32 v{m1_}, v{m0_}")
for l in range(2):
    cvt(tc + 2 + l, tc + l, ts + l, False, True)
    cvt(ts + 2 + l, ts + l, tc + l)
for l in range(2):
    a(f"v_and_b32 v{B3re+l}, v{m0_}, v{tc+2+l}\nv_and_b32 v{B3re+2+l}, v{m1_}, v{tc+2+l}")
    a(f"v_and_b32 v{B3im+l}, v{m0_}, v{ts+2+l}\nv_and_b32 v{B3im+2+l}, v{m1_}, v{ts+2+l}")
TWbc, TWbs = a.v(4), a.v(4)
a(f"v_fmamk_f32 v{fF}, v{fG}, 0x42800000, v{ang}")
a(f"v_mul_f32 v{stp}, 0x3a000000, v{fH}\nv_mul_f32 v{ang2}, v{fF}, v{stp}\nv_mul_f32 v{stp}, 0x41800000, v{stp}")
sincos_chain(4, ang2, stp, TWbc, TWbs)
B4 = a.v(6)
a(f"v_mul_f32 v{stp}, 0x3b800000, v{fC}\nv_mul_f32 v{ang2}, v{fF}, v{stp}\nv_mul_f32 v{stp}, 0x41800000, v{stp}")
sincos_chain(4, ang2, stp, tc, ts)
for i in range(2):
    cvt(B4 + i, ts + 2 * i, ts + 2 * i + 1)
    cvt(B4 + 2 + i, tc + 2 * i, tc + 2 * i + 1)
    cvt(B4 + 4 + i, ts + 2 * i, ts + 2 * i + 1, True, True)
a.free(fF); a.free(fH); a.free(fO)
aG, aXSw, aXSr, aWr, aZw, aZr = [a.v() for _ in range(6)]
t, t2 = a.v(), a.v()
a(f"""
v_lshrrev_b32 v{t}, 3, v0
v_and_b32 v{t2}, 7, v0
v_lshlrev_b32 v{aG}, 14, v{t}
v_lshl_add_u32 v{aG}, v{t2}, 4, v{aG}
v_mul_u32_u24 v{aXSw}, 144, v{t}
v_lshl_add_u32 v{aXSw}, v{t2}, 4, v{aXSw}
v_xor_b32 v{t2}, {WV}, v{t2}
v_lshlrev_b32 v{aZr}, 7, v{t}
v_lshl_add_u32 v{aZr}, v{t2}, 4, v{aZr}
v_lshrrev_b32 v{t}, 4, v{t}
v_lshl_add_u32 v{aXSw}, v{t}, 6, v{aXSw}
v_mul_u32_u24 v{aXSr}, {144*64+256}, v{vG1}
v_mul_u32_u24 v{t}, {144*8}, v{vR}
v_mul_u32_u24 v{t2}, 144, v{vCq}
v_add3_u32 v{aXSr}, v{aXSr}, v{t}, v{t2}
v_lshrrev_b32 v{t}, 1, v{vR}
v_lshl_add_u32 v{aXSr}, v{t}, 6, v{aXSr}
v_lshl_add_u32 v{aXSr}, v{vGh}, 3, v{aXSr}
s_lshl_b32 s38, {WV}, 4
v_add_u32 v{aXSr}, s38, v{aXSr}
v_lshl_add_u32 v{aWr}, v{vG}, 5, v{vC}
v_mul_u32_u24 v{aWr}, 80, v{aWr}
v_add_u32 v{aWr}, s55, v{aWr}
v_and_b32 v{t}, 7, v{vC}
v_xor_b32 v{t}, {WV}, v{t}
v_lshlrev_b32 v{aZw}, 10, v{vC}
v_lshl_add_u32 v{aZw}, v{vG}, 8, v{aZw}
v_lshl_add_u32 v{aZw}, v{t}, 4, v{aZw}
s_lshl_b32 s60, {IDX}, 7
s_add_u32 s61, s60, 0x100000
""")
SP = tc
for r_ in (fG1x8, fGhq, vG1, vGh, ang, stp, ang2):
    a.free(r_)
Lns, Lsd = a.label("nospec"), a.label("specdone")
a(f"s_and_b32 s38, {IDX}, 7\ns_or_b32 s62, s38, {WV}\ns_cmp_lg_u32 s62, 0\ns_cbranch_scc1 {Lns}")
for b in range(2):
    a(f"v_lshl_add_u32 v{t}, v{vG}, 5, v{vC}\nv_lshlrev_b32 v{t}, 4, v{t}\nv_add_u32 v{t}, s51, v{t}")
    if b:
        a(f"v_add_u32 v{t}, 256, v{t}")
    a(f"v_sub_u32 v{t2}, 2048, v{t}\nv_and_b32 v{t2}, 2047, v{t2}\nv_mul_u32_u24 v{t}, 514, v{t}\nv_mul_u32_u24 v{t2}, 514, v{t2}")
    for j, (ad, off) in enumerate(((t, 0), (t2, 0), (t, 512), (t2, 512))):
        a(f"global_load_ushort v{SP+8*b+2*j}, v{ad}, {S_WR} offset:{off}\nglobal_load_ushort v{SP+8*b+2*j+1}, v{ad}, {S_WI} offset:{off}")
a(f"s_waitcnt vmcnt(18)\ns_branch {Lsd}\n{Lns}:\ns_waitcnt vmcnt(2)\n{Lsd}:")
a.free(t); a.free(t2)
stamp()
a("s_barrier")
a("s_barrier")
stamp()
GI = a.v(8)
a(f"buffer_load_dwordx4 {vr(GI,4)}, v{aG}, {SRD}, s60 offen sc1\nbuffer_load_dwordx4 {vr(GI+4,4)}, v{aG}, {SRD}, s61 offen sc1")
a("s_waitcnt vmcnt(2)")
for i in range(4):
    a(f"v_xor_b32 v{WRAW+4+i}, s54, v{WRAW+4+i}")
a(f"ds_write_b128 v{aW}, {vr(WRAW,4)} offset:{WSL}\nds_write_b128 v{aW}, {vr(WRAW+4,4)} offset:{WSL+10240}")
Lns2 = a.label("nospec")
MA = a.v(4)
a(f"s_cmp_lg_u32 s62, 0\ns_cbranch_scc1 {Lns2}")
a(f"""
s_lshr_b32 s38, {IDX}, 4
s_cmp_eq_u32 s54, 0
s_cselect_b32 s39, 0.5, 0
s_cselect_b32 s40, 0, 0.5
s_cmp_eq_u32 s38, 0
s_cselect_b32 s39, {f2u(0.125)}, s39
s_cselect_b32 s40, {f2u(0.125)}, s40
s_cselect_b32 s42, {f2u(0.125)}, 0
""")
for i in range(16):
    a(f"v_lshlrev_b32 v{SP+i}, 16, v{SP+i}")
for b in range(2):
    s = SP + 8 * b
    a(f"v_add_f32 v{s}, v{s}, v{s+2}\nv_sub_f32 v{s+1}, v{s+1}, v{s+3}\nv_add_f32 v{s+4}, v{s+4}, v{s+6}\nv_sub_f32 v{s+5}, v{s+5}, v{s+7}")
    a(f"v_sub_f32 v{s+2}, v{s}, v{s+4}\nv_sub_f32 v{s+3}, v{s+1}, v{s+5}\nv_mul_f32 v{s+2}, s42, v{s+2}\nv_mul_f32 v{s+3}, s42, v{s+3}")
    a(f"v_mul_f32 v{s}, s39, v{s}\nv_mul_f32 v{s+1}, s39, v{s+1}\nv_fmac_f32 v{s}, s40, v{s+4}\nv_fmac_f32 v{s+1}, s40, v{s+5}")
a("s_lshr_b32 s38, s51, 3\ns_sub_u32 s38, 128, s38")
for b in range(2):
    s = SP + 8 * b
    a(f"v_lshl_add_u32 v{s+4}, v{vG}, 5, v{vC}\nv_sub_u32 v{s+4}, s38, v{s+4}")
    if b:
        a(f"v_add_u32 v{s+4}, -16, v{s+4}")
    a(f"v_and_b32 v{s+5}, 15, v{s+4}\nv_bfe_u32 v{s+6}, v{s+4}, 5, 2\nv_lshl_add_u32 v{s+5}, v{s+6}, 4, v{s+5}\nv_lshlrev_b32 v{MA+b}, 2, v{s+5}\nv_bfe_u32 v{MA+2+b}, v{s+4}, 4, 1")
a(f"{Lns2}:")
a("s_waitcnt vmcnt(0)")
a(f"ds_write_b128 v{aXSw}, {vr(GI,4)} offset:{XS}\nds_write_b128 v{aXSw}, {vr(GI+4,4)} offset:{XS+9472}")
nold0, nold1 = a.v(), a.v()
a(f"v_not_b32 v{nold0}, v{GI}\nv_not_b32 v{nold1}, v{GI+4}")
a("s_waitcnt lgkmcnt(0)\ns_barrier")
stamp()
A1 = GI
for tau in range(2):
    for h in range(2):
        a(f"ds_read_b64_tr_b16 {vr(A1+4*tau+2*h,2)}, v{aXSr} offset:{XS+4736*h+576*tau}")
for part in range(2):
    for b in range(2):
        a(f"ds_read_b64 {vr(WRAW+4*part+2*b,2)}, v{aWr} offset:{WSL+10240*part+1280*b}")
D = a.v(16); D2 = a.v(16); tmp = a.v(4); BQ = a.v(8)
for tau in range(2):
    a(f"s_waitcnt lgkmcnt({6-2*tau})")
    mfma32(D + 8 * tau, A1 + 4 * tau, B1re, None)
    mfma32(D + 8 * tau + 4, A1 + 4 * tau, B1im, None)
for q in range(4):
    for tau in range(2):
        cmul(tmp + 2 * tau, tmp + 2 * tau + 1, D + 8 * tau + q, D + 8 * tau + 4 + q, TWa + tau, TWa + 2 + tau, True)
    for tau in range(2):
        cvt(BQ + 2 * q + tau, tmp + 2 * tau, tmp + 2 * tau + 1)
    if q:
        mfma16(D2 + 4 * (q - 1), A2, BQ + 2 * (q - 1))
mfma16(D2 + 12, A2, BQ + 6)
WU = D
a("s_waitcnt lgkmcnt(0)")
for q in range(4):
    for b in range(2):
        for part in range(2):
            w_ = WRAW + 4 * part + 2 * b
            a(f"v_perm_b32 v{WU+4*q+2*b+part}, v{w_+1}, v{w_}, s{56+q}")
Lns3 = a.label("nospec")
MB = WRAW
a(f"s_cmp_lg_u32 s62, 0\ns_cbranch_scc1 {Lns3}")
for b in range(2):
    for i in range(4):
        a(f"ds_bpermute_b32 v{MB+4*b+i}, v{MA+b}, v{D2+i}")
for b in range(2):
    a(f"v_mov_b32 v{WU+2*b}, v{SP+8*b}\nv_mov_b32 v{WU+2*b+1}, v{SP+8*b+1}")
a(f"{Lns3}:")
AI = A1
for q in (1, 2, 3, 0):
    for b in range(2):
        cmul(tmp + 2 * b, tmp + 2 * b + 1, D2 + 4 * q + 2 * b, D2 + 4 * q + 2 * b + 1, WU + 4 * q + 2 * b, WU + 4 * q + 2 * b + 1, False)
    if q == 0:
        Lns4 = a.label("nospec")
        a(f"s_cmp_lg_u32 s62, 0\ns_cbranch_scc1 {Lns4}\ns_waitcnt lgkmcnt(0)")
        for b in range(2):
            s = SP + 8 * b
            a(f"v_cmp_eq_u32 vcc, 1, v{MA+2+b}\nv_cndmask_b32 v{MB+4*b}, v{MB+4*b}, v{MB+4*b+2}, vcc\nv_cndmask_b32 v{MB+4*b+1}, v{MB+4*b+1}, v{MB+4*b+3}, vcc")
            a(f"v_fmac_f32 v{tmp+2*b}, v{MB+4*b}, v{s+2}\nv_fmac_f32 v{tmp+2*b+1}, v{MB+4*b}, v{s+3}")
            a(f"v_fmac_f32 v{tmp+2*b}, v{MB+4*b+1}, v{s+3}\nv_fma_f32 v{tmp+2*b+1}, -v{MB+4*b+1}, v{s+2}, v{tmp+2*b+1}")
        a(f"{Lns4}:")
    for b in range(2):
        cvt(AI + 2 * q + b, tmp + 2 * b, tmp + 2 * b + 1)
    if q == 3:
        mfma32(D + 8, AI + 4, B3re, None)
        mfma32(D + 12, AI + 4, B3im, None)
mfma32(D2, AI, B3re, None)
mfma32(D2 + 4, AI, B3im, None)
A4 = BQ
D4 = (D2 + 8, D)
for p2, src in ((1, D + 8), (0, D2)):
    for pr in range(2):
        for i in range(2):
            r = 2 * pr + i
            cmul(tmp + i, tmp + 2 + i, src + r, src + 4 + r, TWbc + r, TWbs + r, False)
        cvt(A4 + 4 * p2 + pr, tmp, tmp + 1)
        cvt(A4 + 4 * p2 + 2 + pr, tmp + 2, tmp + 3)
    mfma32(D4[p2], A4 + 4 * p2, B4 + 2, None)
    mfma32(D4[p2] + 4, A4 + 4 * p2, B4, None)
GO = GI
for b in range(2):
    cvt(GO + 4 * b + 1, D4[1] + 2 * b, D4[1] + 2 * b + 1)
    cvt(GO + 4 * b + 3, D4[1] + 4 + 2 * b, D4[1] + 4 + 2 * b + 1)
for b in range(2):
    cvt(GO + 4 * b, D4[0] + 2 * b, D4[0] + 2 * b + 1)
    cvt(GO + 4 * b + 2, D4[0] + 4 + 2 * b, D4[0] + 4 + 2 * b + 1)
    a(f"ds_write_b128 v{aZw}, {vr(GO+4*b,4)} offset:{ZS+128*b}")
a("s_waitcnt lgkmcnt(0)\ns_barrier")
a(f"ds_read_b128 {vr(GO,4)}, v{aZr} offset:{ZS}\nds_read_b128 {vr(GO+4,4)}, v{aZr} offset:{ZS+8192}")
a(f"s_waitcnt lgkmcnt(1)\nv_bfi_b32 v{GO}, 1, v{nold0}, v{GO}\nbuffer_store_dwordx4 {vr(GO,4)}, v{aG}, {SRD}, s60 offen sc1")
a(f"s_waitcnt lgkmcnt(0)\nv_bfi_b32 v{GO+4}, 1, v{nold1}, v{GO+4}\nbuffer_store_dwordx4 {vr(GO+4,4)}, v{aG}, {SRD}, s61 offen sc1")
a(f"s_branch {LP3}")
for r_, n_ in ((D, 16), (D2, 16), (tmp, 4), (BQ, 8), (GI, 8), (WRAW, 8), (MA, 4), (B1re, 4), (B1im, 4), (TWa, 4), (A2, 2),
               (B3re, 4), (B3im, 4), (TWbc, 4), (TWbs, 4), (B4, 6), (aW, 1), (aG, 1), (aXSw, 1), (aXSr, 1), (aWr, 1), (aZw, 1), (aZr, 1), (nold0, 1), (nold1, 1)):
    a.free(r_, n_)
sv = nstamp[0]
nstamp[0] = sv - 3 if STAMP else 0
a(f"{LH}:\ns_waitcnt vmcnt(0)\nv_add_u32 v{vEp}, 1, v{vEp}")
stamp()
a("s_barrier")
helper_flags(WS_FLB, WS_EB, vEp)
helper_poll(WS_FLB, WS_EB, vEp, vL)
a("s_barrier")
stamp()
a("s_barrier")
stamp()
a("s_barrier")
a(f"{LP3}:")
stamp()
TW3c, TW3s = a.v(8), a.v(8)
ang, stp, ang2 = a.v(), a.v(), a.v()
a(f"v_mul_f32 v{stp}, 0x3b000000, v{fC}\nv_mul_f32 v{ang}, v{fG}, v{stp}\nv_mul_f32 v{ang}, 4.0, v{ang}")
sincos_chain(4, ang, stp, TW3c, TW3s)
a(f"v_add_f32 v{stp}, 0x3d000000, v{stp}\nv_mul_f32 v{ang}, v{fG}, v{stp}\nv_mul_f32 v{ang}, 4.0, v{ang}")
sincos_chain(4, ang, stp, TW3c + 4, TW3s + 4)
B6 = a.v(6)
a(f"v_mul_f32 v{stp}, 0x3d800000, v{fC}\nv_mul_f32 v{ang}, v{fG}, v{stp}\nv_mul_f32 v{ang}, 4.0, v{ang}")
sincos_chain(4, ang, stp, tc, ts)
for i in range(2):
    cvt(B6 + i, ts + 2 * i, ts + 2 * i + 1)
    cvt(B6 + 2 + i, tc + 2 * i, tc + 2 * i + 1)
    cvt(B6 + 4 + i, ts + 2 * i, ts + 2 * i + 1, True, True)
F2 = a.v(2)
a(f"""
v_mul_f32 v{ang}, v{fG}, v{stp}
v_add_f32 v{ang}, v{ang}, v{ang}
v_add_f32 v{ang2}, v{ang}, v{stp}
v_cos_f32 v{tc}, v{ang}
v_sin_f32 v{tc+1}, v{ang}
v_cos_f32 v{tc+2}, v{ang2}
v_sin_f32 v{tc+3}, v{ang2}
v_mul_f32 v{ang}, 0.5, v{fC}
v_cos_f32 v{tc+4}, v{ang}
v_cmp_eq_u32 vcc, 0, v{vG}
v_cndmask_b32 v{tc+1}, v{tc+1}, -v{tc+4}, vcc
""")
cvt(F2, tc, tc + 1, False, True); cvt(F2 + 1, tc + 2, tc + 3, False, True)
aZTw, aZTr, aT2a, aT2b, aT2r, aO = [a.v() for _ in range(6)]
t = a.v()
a(f"""
s_mul_i32 s38, {WV}, 2560
v_mul_u32_u24 v{aZTw}, 40, v{vC}
v_lshl_add_u32 v{aZTw}, v{vG}, 3, v{aZTw}
v_add_u32 v{aZTw}, s38, v{aZTw}
v_lshl_add_u32 v{t}, v{vG}, 2, v{vR}
v_mul_u32_u24 v{aZTr}, 40, v{t}
v_lshl_add_u32 v{aZTr}, v{vCq}, 3, v{aZTr}
v_add_u32 v{aZTr}, s38, v{aZTr}
s_mul_i32 s38, s44, {S2}
s_mul_i32 s39, s45, {S2}
v_mul_u32_u24 v{aT2a}, 72, v{vC}
v_lshl_add_u32 v{aT2a}, v{vG}, 3, v{aT2a}
v_add_u32 v{aT2b}, s39, v{aT2a}
v_add_u32 v{aT2a}, s38, v{aT2a}
s_mul_i32 s38, {WV}, 144
v_mul_u32_u24 v{aT2r}, {S2}, v{t}
v_lshl_add_u32 v{aT2r}, v{vCq}, 4, v{aT2r}
v_add_u32 v{aT2r}, s38, v{aT2r}
s_lshl_b32 s38, {IDX}, 11
s_lshl_b32 s39, {WV}, 7
s_add_u32 s38, s38, s39
s_add_u32 s38, s38, 1024
v_lshlrev_b32 v{aO}, 18, v{vC}
v_lshl_add_u32 v{aO}, v{vG}, 4, v{aO}
v_add_u32 v{aO}, s38, v{aO}
s_waitcnt vmcnt(0)
""")
if opt["pslp"]:
    a(f"s_sleep {opt['pslp']}")
stamp()
GZ = a.v(8)
poll_toggle(GZ, GZ + 4, aOut, "s46", "s47", old0, old1)
stamp()
a(f"v_and_b32 v{t}, 0xffff, v{GZ+2}\nv_cndmask_b32 v{GZ+4}, v{GZ+4}, v{t}, s[48:49]")
a.free(t)
for tt in range(2):
    for part in range(2):
        a(f"ds_write_b64 v{aZTw}, {vr(GZ+4*tt+2*part,2)} offset:{ZT+640*tt+1280*part}")
A5 = a.v(8)
for part in range(2):
    for h in range(2):
        a(f"ds_read_b64_tr_b16 {vr(A5+4*part+2*h,2)}, v{aZTr} offset:{ZT+640*h+1280*part}")
D = a.v(16); D3 = a.v(16); tmp = a.v(4)
a("s_waitcnt lgkmcnt(2)")
for tau in range(2):
    mfma32(D + 8 * tau, A5, COS[tau], None)
    mfma32(D + 8 * tau + 4, A5, SIN[tau], None)
a("s_waitcnt lgkmcnt(0)")
for tau in range(2):
    mfma32(D + 8 * tau, A5 + 4, NSIN[tau], D + 8 * tau)
    mfma32(D + 8 * tau + 4, A5 + 4, COS[tau], D + 8 * tau + 4)
A6 = GZ
for tau in range(2):
    for pr in range(2):
        for i in range(2):
            r = 2 * pr + i
            cmul(tmp + i, tmp + 2 + i, D + 8 * tau + r, D + 8 * tau + 4 + r, TW3c + 4 * tau + r, TW3s + 4 * tau + r, False)
        cvt(A6 + 4 * tau + pr, tmp, tmp + 1)
        cvt(A6 + 4 * tau + 2 + pr, tmp + 2, tmp + 3)
    mfma32(D3 + 8 * tau, A6 + 4 * tau, B6 + 2, None)
    mfma32(D3 + 8 * tau + 4, A6 + 4 * tau, B6, None)
for tau in range(2):
    for part in range(2):
        o_ = A5 + 4 * tau + 2 * part
        cvt(o_, D3 + 8 * tau + 4 * part, D3 + 8 * tau + 4 * part + 1)
        cvt(o_ + 1, D3 + 8 * tau + 4 * part + 2, D3 + 8 * tau + 4 * part + 3)
        a(f"ds_write_b64 v{aT2b if part else aT2a}, {vr(o_,2)} offset:{T2+32*tau}")
a(f"s_waitcnt lgkmcnt(0)\ns_barrier")
stamp()
a(f"s_cmp_eq_u32 {WV}, 8\ns_cbranch_scc1 L_fin")
for p in range(2):
    for e in range(2):
        a(f"ds_read_b64_tr_b16 {vr(A5+4*p+2*e,2)}, v{aT2r} offset:{T2+72*p+8*e}")
for i in range(4):
    a(f"s_waitcnt lgkmcnt({3-i})")
    mfma16(D + 4 * i, A5 + 2 * i, F2)
for p in range(2):
    for i in range(4):
        cvt(GZ + 4 * p + i, D + 8 * p + 2 * i, D + 8 * p + 2 * i + 1)
    a(f"global_store_dwordx4 v{aO}, {vr(GZ+4*p,4)}, {S_OUT} offset:{64*p} sc1")
stamp()
if STAMP:
    a("s_waitcnt vmcnt(0)")
stamp()
a("s_branch L_fin")
vmax_spec = a.vmax

a.vfree = set(common_free)
a.vmax = 0
nstamp[0] = common_stamp
a(".p2align 6\nL_conv:")
vEp = a.v(2)
LH = a.label("ahelp")
a(f"s_cmp_eq_u32 {WV}, 8\ns_cbranch_scc1 {LH}")
PR = a.v(7); DSK = a.v(2)
t, t2 = a.v(), a.v()
vG1, vGh = a.v(), a.v()
a(f"""
s_lshr_b32 s44, {WV}, 1
s_lshl_b32 s38, {IDX}, 2
s_add_u32 s38, s38, s44
s_lshl_b32 s39, s38, 8
s_and_b32 s40, {WV}, 1
s_lshl_b32 s40, s40, 7
s_add_u32 s39, s39, s40
v_lshl_add_u32 v{t}, v{vL}, 1, s39
s_lshl_b32 s38, s38, 1
v_mov_b32 v{t2}, s38
""")
a(f"global_load_ushort v{PR+6}, v{t2}, {S_LDT}")
for i, s in enumerate((S_ARE, S_AIM, S_BRE, S_BIM, S_CRE, S_CIM)):
    a(f"global_load_ushort v{PR+i}, v{t}, {s}{NT}")
a(f"""
v_and_b32 v{vG1}, 1, v{vG}
v_lshrrev_b32 v{vGh}, 1, v{vG}
s_lshl_b32 s38, {WV}, 7
v_lshl_add_u32 v{t}, v{vGh}, 4, v{vC}
v_lshl_add_u32 v{t}, v{t}, 1, s38
global_load_ushort v{DSK}, v{t}, {S_DSK}
global_load_ushort v{DSK+1}, v{t}, {S_DSK} offset:64
""")
z = a.v(4)
a(f"v_mov_b32 v{z}, 0\nv_mov_b32 v{z+1}, 0\nv_mov_b32 v{z+2}, 0\nv_mov_b32 v{z+3}, 0\nv_lshlrev_b32 v{t}, 4, v0")
a(f"ds_write_b128 v{t}, {vr(z,4)} offset:{KC}\nds_write_b128 v{t}, {vr(z,4)} offset:{KC+8192}")
a(f"v_lshrrev_b32 v{t}, 7, v0\nv_mul_u32_u24 v{t}, {UTS}, v{t}\nv_and_b32 v{t2}, 127, v0\nv_lshl_add_u32 v{t}, v{t2}, 2, v{t}\nds_write_b32 v{t}, v{z} offset:{UT}")
a.free(z, 4)
vR, vCq = a.v(), a.v()
aU0, aU1, aUo = a.v(), a.v(), a.v()
a(f"""
v_bfe_u32 v{vR}, v{vL}, 2, 2
v_and_b32 v{vCq}, 3, v{vL}
v_lshlrev_b32 v{t}, 1, v{vR}
v_and_b32 v{t}, 4, v{t}
v_lshl_add_u32 v{t}, v{vG1}, 1, v{t}
v_lshrrev_b32 v{t2}, 1, v{vCq}
v_lshl_add_u32 v{t2}, v{vGh}, 1, v{t2}
v_xor_b32 v{t}, v{t}, v{t2}
v_lshlrev_b32 v{aU0}, 4, v{t}
v_and_b32 v{t}, 1, v{vCq}
v_lshl_add_u32 v{aU0}, v{t}, 3, v{aU0}
v_lshl_add_u32 v{t}, v{vG1}, 3, v{vR}
v_lshl_add_u32 v{aU0}, v{t}, 7, v{aU0}
v_add_u32 v{aU0}, s41, v{aU0}
v_xor_b32 v{aU1}, 64, v{aU0}
v_lshrrev_b32 v{t}, 2, v{vC}
v_lshl_add_u32 v{t}, v{vGh}, 2, v{t}
v_lshlrev_b32 v{aUo}, 7, v{t}
v_lshl_add_u32 v{aUo}, v{vG1}, 6, v{aUo}
v_and_b32 v{t}, 3, v{vC}
v_lshl_add_u32 v{aUo}, v{t}, 4, v{aUo}
s_lshl_b32 s46, {IDX}, 14
s_add_u32 s46, s46, s41
s_add_u32 s46, s46, {WS_U}
""")
EX = a.v(9)
a(f"v_and_b32 v{t}, 255, v0\nv_lshlrev_b32 v{t}, 3, v{t}\nv_sub_u32 v{t}, 2047, v{t}\nv_lshrrev_b32 v{t2}, 8, v0\nv_mul_u32_u24 v{t2}, {2*KCS}, v{t2}")
t3 = a.v(2)
for e in range(9):
    a(f"""
v_cvt_f32_i32 v{t3}, v{t}
v_cmp_gt_i32 vcc, 128, v{t}
v_cvt_pk_bf16_f32 v{t3}, v{t3}, v{t3}
v_and_b32 v{t3}, 0xffff, v{t3}
v_add_u32 v{t3}, {128-(134<<7)}, v{t3}
v_cndmask_b32 v{t3}, v{t3}, v{t}, vcc
""")
    if e == 8:
        a(f"v_min_u32 v{t3}, 768, v{t3}")
    a(f"v_lshl_add_u32 v{EX+e}, v{t3}, 2, v{t2}")
    if e < 8:
        a(f"v_add_u32 v{t}, -1, v{t}")
a.free(t3, 2)
a("s_waitcnt lgkmcnt(0)\ns_barrier")
stamp()
UG = a.v(8)
a("s_waitcnt vmcnt(9)")
for p in range(2):
    for hh in range(2):
        a(f"ds_read_b64_tr_b16 {vr(UG+4*p+2*hh,2)}, v{aU1 if p else aU0} offset:{UT0+512*hh}")
for p in range(2):
    a(f"s_waitcnt lgkmcnt({2-2*p})\nbuffer_store_dwordx4 {vr(UG+4*p,4)}, v{aUo}, {SRD}, s46 offen offset:{1024*p} sc1")
a.free(aU0); a.free(aU1)
stamp()
aEw, aEr = a.v(), a.v()
a(f"""
s_mul_i32 s38, {WV}, 4608
s_add_u32 s38, s38, {EB}
v_lshl_add_u32 v{aEw}, v{vL}, 2, s38
v_mul_u32_u24 v{aEr}, 288, v{vC}
v_lshl_add_u32 v{aEr}, v{vG}, 4, v{aEr}
v_add_u32 v{aEr}, s38, v{aEr}
s_waitcnt vmcnt(2)
""")
for i in range(7):
    a(f"v_lshlrev_b32 v{PR+i}, 16, v{PR+i}")
dt = PR + 6
LOG2E = 1.4426950408889634
import struct
hi = struct.unpack("<f", struct.pack("<f", LOG2E))[0]
a(f"""
s_mov_b32 s38, {f2u(LOG2E)}
v_mul_f32 v{t}, s38, v{dt}
v_fma_f32 v{t2}, v{dt}, s38, -v{t}
v_fmamk_f32 v{t2}, v{dt}, {f2u(LOG2E-hi)}, v{t2}
v_exp_f32 v{t}, v{t}
v_mul_f32 v{t2}, {f2u(0.6931471805599453)}, v{t2}
v_fma_f32 v{t}, v{t}, v{t2}, v{t}
v_cvt_pk_bf16_f32 v{dt}, v{t}, v{t}
v_and_b32 v{dt}, 0xffff0000, v{dt}
v_mul_f32 v{PR}, v{dt}, v{PR}
v_mul_f32 v{PR+1}, v{dt}, v{PR+1}
v_mul_f32 v{PR+2}, v{dt}, v{PR+2}
v_mul_f32 v{PR+3}, v{dt}, v{PR+3}
v_mul_f32 v{PR}, s38, v{PR}
v_mul_f32 v{PR+1}, 0.15915494, v{PR+1}
""")
EE = a.v(6)
SS = a.v(16)
cmul(SS, SS + 1, PR + 4, PR + 5, PR + 2, PR + 3, False)
for i, l in enumerate((1.0, 8.0, 128.0)):
    a(f"v_mul_f32 v{t}, {f2u(l)}, v{PR}\nv_mul_f32 v{t2}, {f2u(l)}, v{PR+1}\nv_exp_f32 v{t}, v{t}\nv_fract_f32 v{t2}, v{t2}")
    a(f"v_cos_f32 v{EE+2*i}, v{t2}\nv_sin_f32 v{EE+2*i+1}, v{t2}\nv_mul_f32 v{EE+2*i}, v{t}, v{EE+2*i}\nv_mul_f32 v{EE+2*i+1}, v{t}, v{EE+2*i+1}")
pk = a.v(2); pa, pb = a.v(2), a.v(2)
a(f"v_mov_b32 v{pk}, 0x3f80\nds_write_b32 v{aEw}, v{pk}")
cvt(pk + 1, EE + 2, EE + 3, False, True)
a(f"ds_write_b32 v{aEw}, v{pk+1} offset:288")
cur = EE + 2
for c in range(2, 16):
    nxt = pa if c % 2 == 0 else pb
    cmul(nxt, nxt + 1, cur, cur + 1, EE + 2, EE + 3, False)
    cvt(pk + c % 2, nxt, nxt + 1, False, True)
    a(f"ds_write_b32 v{aEw}, v{pk+c%2} offset:{288*c}")
    cur = nxt
BF, AF = a.v(16), a.v(16)
for k in range(4):
    a(f"ds_read_b128 {vr(BF+4*k,4)}, v{aEr} offset:{64*k}")
KD = a.v(12)
nrow = [0]


def put_row(src):
    cvt(pk + nrow[0] % 2, src, src + 1)
    a(f"ds_write_b32 v{aEw}, v{pk+nrow[0]%2} offset:{288*(nrow[0]%16)}")
    nrow[0] += 1


def advance(i):
    s = SS + 2 * i
    cmul(pa, pa + 1, s, s + 1, EE + 4, EE + 5, False)
    a(f"v_mov_b32 v{s}, v{pa}\nv_mov_b32 v{s+1}, v{pa+1}")
    put_row(pa)


def read_tile():
    for k in range(4):
        a(f"ds_read_b128 {vr(AF+4*k,4)}, v{aEr} offset:{64*k}")


def mma_tile(T, pending):
    a(f"s_waitcnt lgkmcnt({pending})")
    for k in range(4):
        mfma32(KD + 4 * T, AF + 4 * k, BF + 4 * k, KD + 4 * T if k else None)


put_row(SS)
for i in range(1, 8):
    cmul(SS + 2 * i, SS + 2 * i + 1, SS + 2 * i - 2, SS + 2 * i - 1, EE, EE + 1, False)
    put_row(SS + 2 * i)
for i in range(8):
    advance(i)
read_tile()
for q in range(2):
    for i in (0, 2, 4, 6):
        advance(i)
mma_tile(0, 8)
a("s_waitcnt vmcnt(0)")
stamp()
a("s_barrier")
for q in range(4):
    for i in (0, 4):
        advance(i)
read_tile()
for q in range(5):
    advance(0)
mma_tile(1, 5)
for q in range(4):
    advance(0)
read_tile()
aK = a.v(4)
a(f"""
s_mul_i32 s38, s44, {KCS}
s_add_u32 s38, s38, {KC}
v_lshlrev_b32 v{t}, 7, v{vGh}
v_lshl_add_u32 v{t}, v{vG1}, 2, v{t}
v_lshl_add_u32 v{t}, v{vC}, 3, v{t}
v_lshl_add_u32 v{aK}, v{t}, 2, s38
v_lshlrev_b32 v{t}, 6, v{vG}
v_sub_u32 v{t2}, 2, v{vGh}
v_lshlrev_b32 v{t2}, v{t2}, v{vC}
v_add3_u32 v{t}, v{t}, v{t2}, 256
v_lshl_add_u32 v{aK+1}, v{t}, 2, s38
v_mul_u32_u24 v{t}, 120, v{vGh}
v_add3_u32 v{aK+2}, v{aK+1}, v{t}, 8
v_lshl_add_u32 v{t}, v{vG}, 6, v{vC}
v_lshl_add_u32 v{aK+3}, v{t}, 2, s38
""".replace("v_add3_u32 v%d, v%d, v%d, 256" % (t, t, t2), "v_add_u32 v%d, v%d, v%d\nv_add_u32 v%d, 256, v%d" % (t, t, t2, t, t)))
mma_tile(2, 0)
aH = aEw
Lodd, Lred = a.label("odd"), a.label("red")
a(f"s_lshl_b32 s38, s44, 12\ns_add_u32 s38, s38, {UT0}\nv_lshl_add_u32 v{aH}, v{vL}, 4, s38\ns_and_b32 s38, {WV}, 1\ns_cmp_eq_u32 s38, 0\ns_cbranch_scc1 {Lodd}")
for T in range(3):
    a(f"ds_write_b128 v{aH}, {vr(KD+4*T,4)} offset:{1024*T}")
a(f"{Lodd}:\ns_waitcnt lgkmcnt(0)\ns_barrier\ns_cbranch_scc0 {Lred}")
for T in range(3):
    a(f"ds_read_b128 {vr(AF+4*T,4)}, v{aH} offset:{1024*T}")
for T in range(3):
    a(f"s_waitcnt lgkmcnt({2-T if T == 0 else (2 if T == 1 else 3)})")
    for r in range(4):
        a(f"v_add_f32 v{KD+4*T+r}, v{KD+4*T+r}, v{AF+4*T+r}")
    if T == 0:
        a(f"ds_write_b128 v{aK}, {vr(KD,4)}")
    elif T == 1:
        a(f"ds_write_b64 v{aK+1}, {vr(KD+4,2)}\nds_write_b64 v{aK+2}, {vr(KD+6,2)}")
    else:
        for r in range(4):
            a(f"ds_write_b32 v{aK+3}, v{KD+8+r} offset:{2048+64*r}")
a(f"{Lred}:\ns_waitcnt lgkmcnt(0)\ns_barrier")
stamp()
for r_, n_ in ((PR, 7), (EE, 6), (SS, 16), (pk, 2), (pa, 2), (pb, 2), (BF, 16), (AF, 16), (KD, 12), (aK, 4), (aEw, 1), (aEr, 1)):
    a.free(r_, n_)
KV = a.v(18); RW = a.v(8); aR = a.v()
for dd in range(2):
    for e in range(9):
        a(f"ds_read_b32 v{KV+9*dd+e}, v{EX+e} offset:{KC+KCS*dd}")
a(f"v_lshrrev_b32 v{t}, 8, v0\nv_mul_u32_u24 v{aR}, 16640, v{t}\nv_and_b32 v{t}, 255, v0\nv_lshl_add_u32 v{aR}, v{t}, 4, v{aR}")
a(f"v_lshrrev_b32 v{t}, 6, v0\nv_mul_u32_u24 v{t}, 4160, v{t}\nv_and_b32 v{t2}, 7, v0\nv_lshl_add_u32 v{t}, v{t2}, 2, v{t}\nv_mov_b32 v{t2}, 0")
for dd in range(2):
    a(f"s_waitcnt lgkmcnt({9 if dd == 0 else 2})")
    for i in range(4):
        cvt(RW + i, KV + 9 * dd + 2 * i, KV + 9 * dd + 2 * i + 1)
        cvt(RW + 4 + i, KV + 9 * dd + 2 * i + 1, KV + 9 * dd + 2 * i + 2)
    a(f"ds_write_b128 v{aR}, {vr(RW,4)} offset:{RT+8320*dd}\nds_write_b128 v{aR}, {vr(RW+4,4)} offset:{RT+8320*dd+4160}")
a(f"ds_write_b32 v{t}, v{t2} offset:{RT+4096}")
a.free(KV, 18); a.free(RW, 8); a.free(aR); a.free(EX, 9)
SK = a.v(16)
for p in range(2):
    a(f"v_lshlrev_b32 v{DSK+p}, 16, v{DSK+p}")
    for i in range(4):
        s = SK + 8 * p + 2 * i
        a(f"v_lshlrev_b32 v{s}, 16, v{UG+4*p+i}\nv_and_b32 v{s+1}, 0xffff0000, v{UG+4*p+i}\nv_mul_f32 v{s}, v{DSK+p}, v{s}\nv_mul_f32 v{s+1}, v{DSK+p}, v{s+1}")
        cvt(s + 1, s, s + 1)
        a(f"v_lshlrev_b32 v{s}, 16, v{s+1}\nv_and_b32 v{s+1}, 0xffff0000, v{s+1}")
old0, old1 = a.v(), a.v()
a(f"v_mov_b32 v{old0}, v{UG}\nv_mov_b32 v{old1}, v{UG+4}")
a.free(UG, 8); a.free(DSK, 2)
aG, aUTw, aYr, aYw, aUf = [a.v() for _ in range(5)]
aT = a.v(4)
a(f"""
v_lshrrev_b32 v{t}, 3, v0
v_and_b32 v{t2}, 7, v0
v_lshlrev_b32 v{aG}, 14, v{t}
v_lshl_add_u32 v{aG}, v{t2}, 4, v{aG}
v_and_b32 v{aYr}, 7, v{t}
v_xor_b32 v{aYr}, v{aYr}, v{t2}
v_lshlrev_b32 v{aYr}, 4, v{aYr}
v_lshl_add_u32 v{aYr}, v{t}, 7, v{aYr}
v_lshlrev_b32 v{aUTw}, 5, v{t}
v_and_b32 v{t}, 3, v0
v_mul_u32_u24 v{t}, {UTS}, v{t}
v_lshrrev_b32 v{t2}, 2, v{t2}
v_lshl_add_u32 v{t}, v{t2}, 4, v{t}
v_add_u32 v{aUTw}, v{aUTw}, v{t}
s_lshl_b32 s60, {IDX}, 7
s_add_u32 s60, s60, {WS_U}
s_add_u32 s61, s60, 0x100000
v_lshl_add_u32 v{t}, v{vGh}, 2, {WV}
v_and_b32 v{t2}, 7, v{vC}
v_xor_b32 v{t}, v{t}, v{t2}
v_lshlrev_b32 v{aYw}, 4, v{t}
v_lshl_add_u32 v{aYw}, v{vG1}, 3, v{aYw}
v_lshl_add_u32 v{aYw}, v{vC}, 7, v{aYw}
s_mul_i32 s38, {WV}, {UTS}
s_add_u32 s38, s38, {UT+480}
v_lshlrev_b32 v{aUf}, 5, v{vC}
v_lshl_add_u32 v{aUf}, v{vG}, 4, v{aUf}
v_add_u32 v{aUf}, s38, v{aUf}
s_mul_i32 s38, {WV}, 8320
s_add_u32 s38, s38, {RT+4160-512}
v_sub_u32 v{t}, 2031, v{vC}
v_lshrrev_b32 v{t2}, 1, v{t}
v_lshl_add_u32 v{t2}, v{vG}, 2, v{t2}
v_lshl_add_u32 v{t2}, v{t2}, 2, s38
v_and_b32 v{t}, 1, v{vC}
v_mul_u32_u24 v{t}, 4160, v{t}
v_sub_u32 v{aT}, v{t2}, v{t}
v_add_u32 v{aT+1}, -1024, v{aT}
v_add_u32 v{aT+2}, -2048, v{aT}
v_add_u32 v{aT+3}, -3072, v{aT}
s_waitcnt lgkmcnt(0)
""")
stamp()
a("s_barrier")
stamp()
GI = a.v(8)
a(f"buffer_load_dwordx4 {vr(GI,4)}, v{aG}, {SRD}, s60 offen sc1\nbuffer_load_dwordx4 {vr(GI+4,4)}, v{aG}, {SRD}, s61 offen sc1")
TF, UF, AC = a.v(32), a.v(32), a.v(32)


def read_T(mu):
    o_ = 0 if mu & 1 else 128
    a(f"ds_read2_b32 {vr(TF+4*mu,2)}, v{aT+(mu>>1)} offset0:{o_} offset1:{o_+1}")
    a(f"ds_read2_b32 {vr(TF+4*mu+2,2)}, v{aT+(mu>>1)} offset0:{o_+2} offset1:{o_+3}")


def read_U(nu):
    a(f"ds_read_b128 {vr(UF+4*nu,4)}, v{aUf} offset:{512*nu}")


Lnc = a.label("noconv0")
a(f"s_cmp_ge_u32 {WV}, 4\ns_cbranch_scc1 {Lnc}")
for mu in range(7, 0, -1):
    read_T(mu)
for i in range(32):
    a(f"v_mov_b32 v{AC+i}, 0")
for k in range(1, 4):
    a(f"v_add_u32 v{aT+k}, -64, v{aT+k}")
a(f"{Lnc}:")
a(f"s_waitcnt vmcnt(1)\nds_write_b128 v{aUTw}, {vr(GI,4)} offset:{UT+512}")
a(f"s_waitcnt vmcnt(0)\nds_write_b128 v{aUTw}, {vr(GI+4,4)} offset:{UT+512+2048}")
nold0, nold1 = a.v(), a.v()
a(f"v_not_b32 v{nold0}, v{GI}\nv_not_b32 v{nold1}, v{GI+4}")
a("s_waitcnt lgkmcnt(0)\ns_barrier")
stamp()
Lnc = a.label("noconv1"); Lloop = a.label("rho")
a(f"s_cmp_ge_u32 {WV}, 4\ns_cbranch_scc1 {Lnc}")
for nu in range(8):
    read_U(nu)
read_T(0)
a(f"v_add_u32 v{aT}, -64, v{aT}\nv_add_u32 v{aUf}, -64, v{aUf}\ns_mov_b32 s38, 0")
a(f".p2align 6\n{Lloop}:")
queue = [("U", n) for n in range(8)] + [("T", 0), ("T", 0)]
for mu in range(7, -1, -1):
    for J in range(mu, 8):
        nu = J - mu
        last = max([i for i, x in enumerate(queue) if x in (("U", nu), ("T", mu))], default=-1)
        if last >= 0:
            a(f"s_waitcnt lgkmcnt({len(queue)-1-last})")
            queue = queue[last + 1:]
        mfma32(AC + 4 * J, TF + 4 * mu, UF + 4 * nu, AC + 4 * J)
        if mu == 0:
            read_U(nu); queue.append(("Un", nu))
    if mu == 4:
        a("s_waitcnt lgkmcnt(6)")
        queue = queue[-6:]
    read_T(mu); queue += [("Tn", mu), ("Tn", mu)]
    if mu & 1 == 0:
        a(f"v_add_u32 v{aT+(mu>>1)}, -64, v{aT+(mu>>1)}")
    if mu == 1:
        a("s_waitcnt lgkmcnt(4)")
        queue = queue[-4:]
    assert len(queue) <= 15
a(f"v_add_u32 v{aUf}, -64, v{aUf}\ns_add_u32 s38, s38, 1\ns_cmp_lt_u32 s38, 8\ns_cbranch_scc1 {Lloop}")
a("s_waitcnt lgkmcnt(0)")
for J in range(8):
    cvt(TF + 2 * J, AC + 4 * J, AC + 4 * J + 1)
    cvt(TF + 2 * J + 1, AC + 4 * J + 2, AC + 4 * J + 3)
    a(f"ds_write_b64 v{aYw}, {vr(TF+2*J,2)} offset:{YS+2048*J}")
a(f"{Lnc}:\ns_waitcnt lgkmcnt(0)")
stamp()
a("s_barrier")
a(f"ds_read_b128 {vr(GI,4)}, v{aYr} offset:{YS}\nds_read_b128 {vr(GI+4,4)}, v{aYr} offset:{YS+8192}")
a(f"s_waitcnt lgkmcnt(1)\nv_bfi_b32 v{GI}, 1, v{nold0}, v{GI}\nbuffer_store_dwordx4 {vr(GI,4)}, v{aG}, {SRD}, s60 offen sc1")
a(f"s_waitcnt lgkmcnt(0)\nv_bfi_b32 v{GI+4}, 1, v{nold1}, v{GI+4}\nbuffer_store_dwordx4 {vr(GI+4,4)}, v{aG}, {SRD}, s61 offen sc1")
stamp()
aOw, aOr, aO = a.v(), a.v(), a.v()
a(f"""
s_mul_i32 s38, {WV}, 3072
v_lshl_add_u32 v{t}, v{vGh}, 4, v{vC}
v_mul_u32_u24 v{aOw}, 48, v{t}
v_lshl_add_u32 v{aOw}, v{vG1}, 4, v{aOw}
v_add_u32 v{aOw}, s38, v{aOw}
v_lshl_add_u32 v{t}, v{vG}, 3, v{vR}
v_mul_u32_u24 v{aOr}, 48, v{t}
v_lshl_add_u32 v{aOr}, v{vCq}, 3, v{aOr}
v_add_u32 v{aOr}, s38, v{aOr}
s_lshl_b32 s38, {IDX}, 15
s_lshl_b32 s39, {WV}, 7
s_add_u32 s38, s38, s39
v_lshlrev_b32 v{aO}, 11, v{vC}
v_lshl_add_u32 v{aO}, v{vG}, 4, v{aO}
v_add_u32 v{aO}, s38, v{aO}
s_waitcnt vmcnt(0)
""")
if opt["pslp"]:
    a(f"s_sleep {opt['pslp']}")
stamp()
GY = UF
poll_toggle(GY, GY + 4, aUo, "s46", "s46", old0, old1, imm1=1024)
stamp()
for p in range(2):
    for i in range(4):
        y = GY + 4 * p + i; s = SK + 8 * p + 2 * i
        a(f"v_lshlrev_b32 v{t}, 16, v{y}\nv_and_b32 v{t2}, 0xffff0000, v{y}\nv_add_f32 v{t}, v{t}, v{s}\nv_add_f32 v{t2}, v{t2}, v{s+1}")
        cvt(y, t, t2)
    a(f"ds_write_b128 v{aOw}, {vr(GY+4*p,4)} offset:{OT+1536*p}")
for p in range(2):
    for hh in range(2):
        a(f"ds_read_b64_tr_b16 {vr(GI+4*p+2*hh,2)}, v{aOr} offset:{OT+1536*p+192*hh}")
for p in range(2):
    a(f"s_waitcnt lgkmcnt({2-2*p})\nglobal_store_dwordx4 v{aO}, {vr(GI+4*p,4)}, {S_OUT} offset:{64*p} sc1")
stamp()
if STAMP:
    a("s_waitcnt vmcnt(0)")
stamp()
a("s_branch L_fin")
a(f"{LH}:")
nstamp[0] = common_stamp
helper_start(WS_EA, vEp, vL, "L_conv", "L_codeend")
a(f"s_barrier\ns_waitcnt vmcnt(0)\nv_add_u32 v{vEp}, 1, v{vEp}\ns_barrier")
stamp()
helper_flags(WS_FLA, WS_EA, vEp)
a("s_barrier\ns_barrier")
stamp()
helper_poll(WS_FLA, WS_EA, vEp, vL)
stamp()
a("s_barrier\ns_barrier\ns_barrier")
a("L_fin:")
dump_stamps()
a("L_end:\ns_endpgm\nL_codeend:")

body = a.finish()
nv = max(a.vmax, vmax_spec)
nv = (nv + 7) // 8 * 8
hdr = open("concat_heads__ssm_conv_s4__spectral_gfnet__prompt.s.ref").read().split("\n")
out = [l for l in hdr if l.startswith(";") and "@launch" not in l and "Override" not in l and "grid=ceil" not in l]
out.append(f"; @launch grid=(256,1,1) block=(576,1,1) lds={LDS_BYTES}")
out.append('.amdgcn_target "amdgcn-amd-amdhsa--gfx950"\n.text')
out.append(f".globl {KN}\n.p2align 8\n.type {KN},@function\n{KN}:")
out += [("    " + l if not (l.endswith(":") or l.startswith(".")) else l) for l in body]
out.append('.section .rodata,"a"\n.p2align 6')
out.append(f""".amdhsa_kernel {KN}
  .amdhsa_next_free_vgpr {nv}
  .amdhsa_next_free_sgpr 102
  .amdhsa_accum_offset {nv}
  .amdhsa_group_segment_fixed_size 0
  .amdhsa_kernarg_size 120
  .amdhsa_user_sgpr_count 2
  .amdhsa_user_sgpr_kernarg_segment_ptr 1
  .amdhsa_system_sgpr_workgroup_id_x 1
.end_amdhsa_kernel""")
print("\n".join(out))
print(f"vgprs spec {vmax_spec} conv {a.vmax} -> {nv}; nops added {a.added}; lines {len(body)}", file=sys.stderr)
```
